```python
import torch

def _softmax(x, axis=-1):
    return torch.softmax(x, dim=axis)
def _gelu(x):
    return torch.nn.functional.gelu(x, approximate="tanh")
def _silu(x):
    return torch.nn.functional.silu(x)
def _sigmoid(x):
    return torch.sigmoid(x)
def _layernorm(x, axis=-1, eps=1e-5):
    m = x.mean(dim=axis, keepdim=True)
    v = x.var(dim=axis, keepdim=True, unbiased=False)
    return (x - m) / torch.sqrt(v + eps)
def _scatter_add(tgt, idx, src, axis=0):
    return tgt.clone().index_add_(axis, idx, src)
def _segment_sum(src, seg, n):
    out = torch.zeros((n,) + src.shape[1:], dtype=src.dtype)
    return out.index_add_(0, seg, src)
def _pad(x, pw):
    flat = tuple(v for pair in reversed(pw) for v in pair)
    return torch.nn.functional.pad(x, flat)

kernel_name = 'sequential_preLN__spectral_fnet__swiglu_ffn__prompt'

def setup_inputs():

    _w = (lambda a: (lambda t: t.to(torch.bfloat16) if t.is_floating_point() else t)(torch.as_tensor(a)))
    def _A_setup():
        B, S, D = 1, 2048, 1024
        ns = torch.arange(S)[:, None] * torch.arange(S)[None, :]
        nd = torch.arange(D)[:, None] * torch.arange(D)[None, :]
        Ws_re = torch.cos(-2.0 * torch.pi * ns / S).to(float)
        Ws_im = torch.sin(-2.0 * torch.pi * ns / S).to(float)
        Wd_re = torch.cos(-2.0 * torch.pi * nd / D).to(float)
        Wd_im = torch.sin(-2.0 * torch.pi * nd / D).to(float)
        return {
            "x": _w((lambda *s: torch.randn(*s, dtype=torch.bfloat16) * 0.05)(B, S, D)),
            "dft_seq_re": _w(Ws_re),
            "dft_seq_im": _w(Ws_im),
            "dft_hid_re": _w(Wd_re),
            "dft_hid_im": _w(Wd_im),
        }
    _A_in = _A_setup()

    def _B_setup():
        B, S, D, F = 1, 2048, 1024, 3584
        return {
            "x": _w((lambda *s: torch.randn(*s, dtype=torch.bfloat16) * 0.05)(B, S, D)),
            "w_gate": _w((lambda *s: torch.randn(*s, dtype=torch.bfloat16) * 0.2)(D, F)),
            "w_up": _w((lambda *s: torch.randn(*s, dtype=torch.bfloat16) * 0.2)(D, F)),
            "w_down": _w((lambda *s: torch.randn(*s, dtype=torch.bfloat16) * 0.2)(F, D)),
        }
    _B_in = _B_setup()

    return {
        "A_x": _A_in["x"],
        "A_dft_seq_re": _A_in["dft_seq_re"],
        "A_dft_seq_im": _A_in["dft_seq_im"],
        "A_dft_hid_re": _A_in["dft_hid_re"],
        "A_dft_hid_im": _A_in["dft_hid_im"],
        "B_x": _B_in["x"],
        "B_w_gate": _B_in["w_gate"],
        "B_w_up": _B_in["w_up"],
        "B_w_down": _B_in["w_down"],
    }

def reference(A_x, A_dft_seq_re, A_dft_seq_im, A_dft_hid_re, A_dft_hid_im, B_x, B_w_gate, B_w_up, B_w_down):
    def _A_ref(x, dft_seq_re, dft_seq_im, dft_hid_re, dft_hid_im):
        a = torch.einsum("bsd,ed->bse", x, dft_hid_re)
        b = torch.einsum("bsd,ed->bse", x, dft_hid_im)
        y = torch.einsum("ts,bse->bte", dft_seq_re, a) - torch.einsum("ts,bse->bte", dft_seq_im, b)
        return y

    def _B_ref(x, w_gate, w_up, w_down):
        g = _silu(x @ w_gate)
        u = x @ w_up
        return (g * u) @ w_down

    x = A_x
    h = x + _A_ref(_layernorm(x, axis=-1), A_dft_seq_re, A_dft_seq_im, A_dft_hid_re, A_dft_hid_im)
    h2 = h + _B_ref(_layernorm(h, axis=-1), B_w_gate, B_w_up, B_w_down)
    return h2
```

```python
WS_U = 0x0000000
WS_HC = 0x1000000
WS_H = 0x1400000
WS_SS = 0x1800000
WS_XM = 0x1840000
WS_ACT = 0x2000000
WS_PART = 0x3000000
WS_STAMP = 0xF000000
WS_BYTES = 0x10000000

KARG = dict(x=0, cs=8, ss=16, cd=24, sd=32, bx=40, wg=48, wu=56, wd=64, out=72, dbg=80, ws=88)


class K:
    def __init__(self, name):
        self.name = name
        self.lines = []
        self.nlabel = 0

    def __call__(self, s, *a):
        for ln in s.split('\n'):
            ln = ln.strip()
            if ln:
                self.lines.append('    ' + ln)

    def c(self, s):
        self.lines.append('    ; ' + s)

    def label(self, l):
        self.lines.append(l + ':')

    def newlabel(self, base):
        self.nlabel += 1
        return 'L_%s_%s_%d' % (self.name, base, self.nlabel)

    def nop(self, n):
        while n > 0:
            k = min(n, 16)
            self('s_nop %d' % (k - 1))
            n -= k

    def text(self, nvgpr, accum_offset, nsgpr=102):
        hdr = ['.text', '.globl %s' % self.name, '.p2align 8', '.type %s,@function' % self.name, '%s:' % self.name]
        kd = ['.section .rodata,"a"', '.p2align 6', '.amdhsa_kernel %s' % self.name,
              '  .amdhsa_next_free_vgpr %d' % nvgpr,
              '  .amdhsa_next_free_sgpr %d' % nsgpr,
              '  .amdhsa_accum_offset %d' % accum_offset,
              '  .amdhsa_group_segment_fixed_size 0',
              '  .amdhsa_kernarg_size 96',
              '  .amdhsa_user_sgpr_count 2',
              '  .amdhsa_user_sgpr_kernarg_segment_ptr 1',
              '  .amdhsa_system_sgpr_workgroup_id_x 1',
              '  .amdhsa_float_denorm_mode_32 3',
              '  .amdhsa_float_denorm_mode_16_64 3',
              '.end_amdhsa_kernel']
        return '\n'.join(hdr + self.lines + kd) + '\n'


def vr(b, n=1):
    return 'v%d' % b if n == 1 else 'v[%d:%d]' % (b, b + n - 1)


def ar(b, n=1):
    return 'a%d' % b if n == 1 else 'a[%d:%d]' % (b, b + n - 1)


def sr(b, n=1):
    return 's%d' % b if n == 1 else 's[%d:%d]' % (b, b + n - 1)


def interleave(main, side, start=0, end=None):
    n = len(main)
    if end is None:
        end = n
    span = end - start
    out = []
    slots = [[] for _ in range(n)]
    m = len(side)
    for k, g in enumerate(side):
        pos = start + (k * span) // m if m else 0
        slots[min(pos, n - 1)].append(g)
    for i in range(n):
        out.append(main[i])
        for g in slots[i]:
            out.extend(g)
    return out


def srd(k, d, base, nbytes, off=0):
    if off:
        k('s_add_u32 s%d, s%d, 0x%x' % (d, base, off))
        k('s_addc_u32 s%d, s%d, 0' % (d + 1, base + 1))
    else:
        k('s_mov_b32 s%d, s%d' % (d, base))
        k('s_mov_b32 s%d, s%d' % (d + 1, base + 1))
    k('s_mov_b32 s%d, 0x%x' % (d + 2, nbytes))
    k('s_mov_b32 s%d, 0x20000' % (d + 3))


SB = 64


def stamp(k, i):
    if i == 0:
        k('s_memrealtime s[%d:%d]' % (SB, SB + 1))
    k('s_memtime s[%d:%d]' % (SB + 4 + 2 * i, SB + 5 + 2 * i))


def stamp_flush(k, kidx, n, s_ws, s_tmp, s_wg, vt, s_wave=None):
    t = s_tmp
    k('s_memrealtime s[%d:%d]' % (SB + 2, SB + 3))
    stamp(k, n - 1)
    srd(k, t, s_ws, 0x100000, WS_STAMP)
    k('s_lshl_b32 s%d, s%d, 7' % (t + 4, s_wg))
    k('s_add_u32 s%d, s%d, %d' % (t + 4, t + 4, kidx * 512 * 128))
    k('s_waitcnt lgkmcnt(0)')
    k('v_mov_b32 v%d, s%d' % (vt + 4, t + 4))
    for q in range((4 + 2 * n + 3) // 4):
        for i in range(4):
            k('v_mov_b32 v%d, s%d' % (vt + i, SB + 4 * q + i))
        k('buffer_store_dwordx4 v[%d:%d], v%d, s[%d:%d], 0 offen offset:%d' % (vt, vt + 3, vt + 4, t, t + 3, 16 * q))
        k('s_nop 1')
```

```python
HDR = open('sequential_preLN__spectral_fnet__swiglu_ffn__prompt.s.ref').read().split('; Override')[0]

def build(kernels, launches=None):
    by = {k['name']: k for k in kernels}
    if launches is None:
        launches = [k['name'] for k in kernels]
    out = HDR
    for n in launches:
        k = by[n]
        out += '; @launch kernel=%s grid=(%d,1,1) block=(%d,1,1) lds=%d\n' % (n, k['grid'], k['block'], k['lds'])
    out += '.amdgcn_target "amdgcn-amd-amdhsa--gfx950"\n'
    for k in kernels:
        out += k['text']
    out += '.text\nL_code_end:\n'
    return out
```

```python
from asmlib import *
from kc import f32hex

WS_X2 = WS_U + 0x400000


def gen_ka(diag=False, kidx=0, name='ka_kernel'):
    k = K(name)
    ROW = 544
    LDS = 32 * ROW
    sWS, sWave, sG, sHF = 4, 28, 29, 30
    sT = 32
    sM = 40
    sR = 44
    sNq = 48
    RX, RU, RX2, RM = 12, 16, 20, 24
    vX = 0
    vE = 32
    vF2c, vF2s, vC3, vS3, vS3n, vGr, vGi = 96, 100, 104, 108, 112, 116, 120
    vTc, vTs = 124, 132
    vLane, vN, vQ = 140, 141, 142
    vT = 144
    NV = 176

    done = k.newlabel('done')
    k('s_cmp_ge_u32 s2, 256')
    k('s_cbranch_scc1 %s' % done)
    if diag:
        stamp(k, 0)
    k('s_load_dwordx2 s[8:9], s[0:1], %d' % KARG['x'])
    k('s_load_dwordx2 s[4:5], s[0:1], %d' % KARG['ws'])
    k('v_and_b32 v%d, 63, v0' % vLane)
    k('v_lshrrev_b32 v%d, 6, v0' % vT)
    k('v_and_b32 v%d, 15, v0' % vN)
    k('v_readfirstlane_b32 s%d, v%d' % (sWave, vT))
    k('v_lshrrev_b32 v%d, 4, v%d' % (vQ, vLane))
    k('s_and_b32 s%d, s2, 7' % sT)
    k('s_lshr_b32 s%d, s2, 4' % (sT + 1))
    k('s_lshl_b32 s%d, s%d, 3' % (sT + 1, sT + 1))
    k('s_add_u32 s%d, s%d, s%d' % (sG, sT, sT + 1))
    k('s_bfe_u32 s%d, s2, 0x10003' % sHF)
    k('v_lshlrev_b32 v%d, 2, v%d' % (vT, vN))
    k('v_lshl_add_u32 v%d, v%d, 9, v%d' % (vT, vQ, vT))
    k('s_lshl_b32 s%d, s%d, 9' % (sT, sWave))
    k('s_add_u32 s%d, s%d, s%d' % (sT, sT, sG))
    k('s_lshl_b32 s%d, s%d, 11' % (sT, sT))
    for jj in range(1, 4):
        k('s_add_u32 s%d, s%d, 0x%x' % (sT + jj, sT, jj * 128 * 2048))
    k('s_waitcnt lgkmcnt(0)')
    srd(k, RX, 8, 2048 * 2048)
    for jj in range(4):
        for i in range(8):
            k('buffer_load_dword v%d, v%d, s[%d:%d], s%d offen offset:%d' % (vX + 8 * jj + i, vT, RX, RX + 3, sT + jj, 64 * i))
    if diag:
        stamp(k, 1)
    srd(k, RU, sWS, 0x400000, WS_U)
    srd(k, RX2, sWS, 16 * 10 * 512, WS_X2)
    srd(k, RM, sWS, 8192, WS_XM)

    A0, ST, C0, C1, S0, S1 = vT + 2, vT + 3, vT + 4, vT + 5, vT + 6, vT + 7
    fN, fQ, fEl = vT + 8, vT + 9, vT + 10
    k('v_cvt_f32_u32 v%d, v%d' % (fN, vN))
    k('v_cvt_f32_u32 v%d, v%d' % (fQ, vQ))
    k('s_lshl_b32 s%d, s%d, 4' % (sT + 4, sHF))
    k('v_add_u32 v%d, s%d, v%d' % (fEl, sT + 4, vN))
    k('v_cvt_f32_u32 v%d, v%d' % (fEl, fEl))
    k('v_mul_f32 v%d, %s, v%d' % (ST, f32hex(1 / 32.), fEl))
    k('v_mul_f32 v%d, v%d, v%d' % (A0, ST, fQ))
    k('v_mul_f32 v%d, %s, v%d' % (A0, f32hex(8.), A0))
    for p in range(4):
        k('v_cos_f32 v%d, v%d' % (C0, A0))
        k('v_sin_f32 v%d, -v%d' % (S0, A0))
        k('v_add_f32 v%d, v%d, v%d' % (A0, A0, ST))
        k('v_cos_f32 v%d, v%d' % (C1, A0))
        k('v_sin_f32 v%d, -v%d' % (S1, A0))
        k('v_add_f32 v%d, v%d, v%d' % (A0, A0, ST))
        k('v_cvt_pk_f16_f32 v%d, v%d, v%d' % (vF2c + p, C0, C1))
        k('v_cvt_pk_f16_f32 v%d, v%d, v%d' % (vF2s + p, S0, S1))
    k('v_mul_f32 v%d, %s, v%d' % (ST, f32hex(1 / 1024.), fEl))
    k('v_mul_f32 v%d, v%d, v%d' % (A0, ST, fQ))
    k('v_mul_f32 v%d, %s, v%d' % (A0, f32hex(8.), A0))
    for d in range(8):
        b, ip = d & 1, d >> 1
        k('v_cos_f32 v%d, v%d' % (vTc + 4 * b + ip, A0))
        k('v_sin_f32 v%d, v%d' % (vTs + 4 * b + ip, A0))
        if d < 7:
            k('v_add_f32 v%d, v%d, v%d' % (A0, A0, ST))
    k('v_mul_f32 v%d, %s, v%d' % (ST, f32hex(1 / 32.), fN))
    k('v_mul_f32 v%d, v%d, v%d' % (vT + 11, ST, fQ))
    k('v_mul_f32 v%d, %s, v%d' % (vT + 11, f32hex(8.), vT + 11))
    k('v_add_f32 v%d, v%d, v%d' % (vT + 12, ST, ST))
    for p in range(4):
        b = p >> 1
        if p == 0:
            k('v_mov_b32 v%d, v%d' % (A0, vT + 11))
        elif p == 2:
            k('v_add_f32 v%d, v%d, v%d' % (A0, vT + 11, ST))
        k('v_cos_f32 v%d, v%d' % (C0, A0))
        k('v_sin_f32 v%d, v%d' % (S0, A0))
        k('v_add_f32 v%d, v%d, v%d' % (A0, A0, vT + 12))
        k('v_cos_f32 v%d, v%d' % (C1, A0))
        k('v_sin_f32 v%d, v%d' % (S1, A0))
        k('v_add_f32 v%d, v%d, v%d' % (A0, A0, vT + 12))
        k('v_cvt_pk_f16_f32 v%d, v%d, v%d' % (vC3 + p, C0, C1))
        k('v_cvt_pk_f16_f32 v%d, v%d, v%d' % (vS3 + p, S0, S1))
        k('v_cvt_pk_f16_f32 v%d, -v%d, -v%d' % (vS3n + p, S0, S1))
    k('v_mul_f32 v%d, %s, v%d' % (ST, f32hex(1 / 16.), fN))
    k('v_mul_f32 v%d, v%d, v%d' % (vT + 11, ST, fQ))
    k('v_add_f32 v%d, v%d, v%d' % (vT + 11, vT + 11, vT + 11))
    for p in range(4):
        mult = 8 * (p >> 1) + (p & 1)
        k('v_mov_b32 v%d, %s' % (vT + 12, f32hex(float(mult))))
        k('v_fma_f32 v%d, v%d, v%d, v%d' % (A0, ST, vT + 12, vT + 11))
        k('v_cos_f32 v%d, v%d' % (C0, A0))
        k('v_sin_f32 v%d, v%d' % (S0, A0))
        k('s_nop 0')
        k('v_cvt_pk_f16_f32 v%d, v%d, v%d' % (vGr + p, C0, S0))
        k('v_cvt_pk_f16_f32 v%d, v%d, -v%d' % (vGi + p, S0, C0))
    if diag:
        stamp(k, 2)
    P = vT + 2
    for jj in range(4):
        k('s_waitcnt vmcnt(%d)' % (8 * (3 - jj)))
        for i in range(8):
            e = vE + 16 * jj + 2 * i
            k('v_lshlrev_b32 v%d, 16, v%d' % (e, vX + 8 * jj + i))
            k('v_and_b32 v%d, 0xffff0000, v%d' % (e + 1, vX + 8 * jj + i))
        e = vE + 16 * jj
        p = P + 2 * jj
        k('v_pk_add_f32 %s, %s, %s' % (vr(p, 2), vr(e, 2), vr(e + 2, 2)))
        for i in range(2, 8):
            k('v_pk_add_f32 %s, %s, %s' % (vr(p, 2), vr(p, 2), vr(e + 2 * i, 2)))
    if diag:
        stamp(k, 3)

    def reduce4(chains):
        k('s_nop 1')
        for c in chains:
            k('v_permlane32_swap_b32 v%d, v%d' % (c[0], c[1]))
            k('v_permlane32_swap_b32 v%d, v%d' % (c[2], c[3]))
        for c in chains:
            k('v_add_f32 v%d, v%d, v%d' % (c[0], c[0], c[1]))
            k('v_add_f32 v%d, v%d, v%d' % (c[2], c[2], c[3]))
        k('s_nop 1')
        for c in chains:
            k('v_permlane16_swap_b32 v%d, v%d' % (c[0], c[2]))
        for c in chains:
            k('v_add_f32 v%d, v%d, v%d' % (c[0], c[0], c[2]))
        for mode in ('quad_perm:[1,0,3,2]', 'quad_perm:[2,3,0,1]', 'row_half_mirror', 'row_mirror'):
            k('s_nop 1')
            for c in chains:
                k('v_add_f32_dpp v%d, v%d, v%d %s row_mask:0xf bank_mask:0xf' % (c[0], c[0], c[0], mode))

    reduce4([tuple(P + 2 * jj for jj in range(4)), tuple(P + 2 * jj + 1 for jj in range(4))])
    vMean, vAlt = vT + 10, vT + 11
    k('v_add_f32 v%d, v%d, v%d' % (vMean, P, P + 1))
    k('v_sub_f32 v%d, v%d, v%d' % (vAlt, P, P + 1))
    k('v_mul_f32 v%d, %s, v%d' % (vMean, f32hex(1 / 1024.), vMean))
    LROW = [0, 32, 16, 48]
    k('s_nop 0')
    for jj in range(4):
        k('v_readlane_b32 s%d, v%d, %d' % (sM + jj, vMean, LROW[jj]))
    k('s_nop 1')
    for jj in range(4):
        e = vE + 16 * jj
        k('v_mov_b32 v%d, s%d' % (vT + 12, sM + jj))
        for i in range(8):
            k('v_pk_add_f32 %s, %s, %s op_sel_hi:[1,0] neg_lo:[0,1] neg_hi:[0,1]' % (vr(e + 2 * i, 2), vr(e + 2 * i, 2), vr(vT + 12, 2)))
        p = P + 2 * jj
        k('v_pk_mul_f32 %s, %s, %s' % (vr(p, 2), vr(e, 2), vr(e, 2)))
        for i in range(1, 8):
            k('v_pk_fma_f32 %s, %s, %s, %s' % (vr(p, 2), vr(e + 2 * i, 2), vr(e + 2 * i, 2), vr(p, 2)))
        k('v_add_f32 v%d, v%d, v%d' % (p, p, p + 1))
    reduce4([tuple(P + 2 * jj for jj in range(4))])
    V = P
    k('v_mul_f32 v%d, %s, v%d' % (V, f32hex(1 / 1024.), V))
    k('v_cvt_pk_bf16_f32 v%d, v%d, v%d' % (V, V, V))
    k('v_lshlrev_b32 v%d, 16, v%d' % (V, V))
    k('v_add_f32 v%d, %s, v%d' % (V, f32hex(1e-5), V))
    k('v_cvt_pk_bf16_f32 v%d, v%d, v%d' % (V, V, V))
    k('v_lshlrev_b32 v%d, 16, v%d' % (V, V))
    k('v_sqrt_f32 v%d, v%d' % (V, V))
    k('s_nop 0')
    k('v_cvt_pk_bf16_f32 v%d, v%d, v%d' % (V, V, V))
    k('v_lshlrev_b32 v%d, 16, v%d' % (V, V))
    k('v_rcp_f32 v%d, v%d' % (V, V))
    k('s_nop 0')
    k('v_mul_f32 v%d, v%d, v%d' % (vAlt, vAlt, V))
    k('v_and_b32 v%d, 1, v%d' % (vT + 12, vQ))
    k('v_lshrrev_b32 v%d, 1, v%d' % (vT + 13, vQ))
    k('v_lshl_add_u32 v%d, v%d, 1, v%d' % (vT + 12, vT + 12, vT + 13))
    k('v_lshlrev_b32 v%d, 9, v%d' % (vT + 12, vT + 12))
    k('s_lshr_b32 s%d, s%d, 9' % (sT + 4, sT))
    k('buffer_store_dword v%d, v%d, s[%d:%d], s%d offen' % (vMean, vT + 12, RM, RM + 3, sT + 4))
    for jj in range(4):
        k('v_readlane_b32 s%d, v%d, %d' % (sR + jj, V, LROW[jj]))
        k('v_readlane_b32 s%d, v%d, %d' % (sNq + jj, vAlt, LROW[jj]))
    if diag:
        stamp(k, 4)
    vLW, vLX = vT + 14, vT + 15
    k('v_lshlrev_b32 v%d, 5, v%d' % (vLW, vN))
    k('v_lshl_add_u32 v%d, v%d, 3, v%d' % (vLW, vQ, vLW))
    k('s_mul_i32 s%d, s%d, %d' % (sT + 4, sWave, 8 * ROW))
    k('v_add_u32 v%d, s%d, v%d' % (vLW, sT + 4, vLW))
    k('v_mul_u32_u24 v%d, %d, v%d' % (vLX, ROW, vLane))
    k('v_add_u32 v%d, s%d, v%d' % (vLX, sT + 4, vLX))
    k('v_cmp_eq_u32 vcc, 0, v%d' % vLane)
    for jj in range(4):
        e = vE + 16 * jj
        k('v_mov_b32 v%d, s%d' % (vT + 12, sR + jj))
        for i in range(8):
            k('v_pk_mul_f32 %s, %s, %s op_sel_hi:[1,0]' % (vr(e + 2 * i, 2), vr(e + 2 * i, 2), vr(vT + 12, 2)))
        k('v_cvt_pk_f16_f32 v%d, s%d, v%d' % (vT + 16 + jj, sNq + jj, e))
        a = vX + 8 * jj
        for b in range(2):
            for p in range(4):
                k('v_cvt_pk_f16_f32 v%d, v%d, v%d' % (a + 4 * b + p, e + 4 * p + b, e + 4 * p + 2 + b))
        k('v_cndmask_b32 v%d, 0, v%d, vcc' % (vT + 16 + jj, vT + 16 + jj))
    k('s_mov_b64 exec, 3')
    for jj in range(4):
        k('ds_write_b32 v%d, v%d offset:%d' % (vLX, vT + 16 + jj, 2 * jj * ROW + 512))
    k('s_mov_b64 exec, -1')
    for jj in range(4):
        e = vE + 16 * jj
        a = vX + 8 * jj
        for b in range(2):
            k('v_mfma_f32_16x16x32_f16 %s, %s, %s, 0' % (vr(e + 4 * b, 4), vr(a + 4 * b, 4), vr(vF2c, 4)))
            k('v_mfma_f32_16x16x32_f16 %s, %s, %s, 0' % (vr(e + 8 + 4 * b, 4), vr(a + 4 * b, 4), vr(vF2s, 4)))
    W = vT + 16
    for jj in range(4):
        e = vE + 16 * jj
        a = vX + 8 * jj
        if jj == 3:
            k('s_nop 3')
        for h in range(4):
            re, im, c, s, w = e + 2 * h, e + 8 + 2 * h, vTc + 2 * h, vTs + 2 * h, W + 2 * h
            k('v_pk_mul_f32 %s, %s, %s' % (vr(w, 2), vr(re, 2), vr(c, 2)))
            k('v_pk_fma_f32 %s, %s, %s, %s' % (vr(w, 2), vr(im, 2), vr(s, 2), vr(w, 2)))
            k('v_pk_mul_f32 %s, %s, %s' % (vr(im, 2), vr(im, 2), vr(c, 2)))
            k('v_pk_fma_f32 %s, %s, %s, %s neg_lo:[1,0,0] neg_hi:[1,0,0]' % (vr(im, 2), vr(re, 2), vr(s, 2), vr(im, 2)))
        for h in range(4):
            k('v_cvt_pk_f16_f32 v%d, v%d, v%d' % (a + h, W + 2 * h, W + 2 * h + 1))
            k('v_cvt_pk_f16_f32 v%d, v%d, v%d' % (a + 4 + h, e + 8 + 2 * h, e + 9 + 2 * h))
        k('s_nop 1')
        k('v_mfma_f32_16x16x32_f16 %s, %s, %s, 0' % (vr(e, 4), vr(a, 4), vr(vC3, 4)))
        k('v_mfma_f32_16x16x32_f16 %s, %s, %s, 0' % (vr(e + 4, 4), vr(a + 4, 4), vr(vC3, 4)))
        k('v_mfma_f32_16x16x32_f16 %s, %s, %s, %s' % (vr(e, 4), vr(a + 4, 4), vr(vS3, 4), vr(e, 4)))
        k('v_mfma_f32_16x16x32_f16 %s, %s, %s, %s' % (vr(e + 4, 4), vr(a, 4), vr(vS3n, 4), vr(e + 4, 4)))
    for jj in range(4):
        e = vE + 16 * jj
        if jj == 3:
            k('s_nop 3')
        for part in range(2):
            k('v_cvt_pk_f16_f32 v%d, v%d, v%d' % (e + 8 + 2 * part, e + 4 * part, e + 4 * part + 1))
            k('v_cvt_pk_f16_f32 v%d, v%d, v%d' % (e + 9 + 2 * part, e + 4 * part + 2, e + 4 * part + 3))
            k('ds_write_b64 v%d, %s offset:%d' % (vLW, vr(e + 8 + 2 * part, 2), (2 * jj + part) * ROW))
    if diag:
        stamp(k, 5)
    vRA = vT + 2
    k('v_lshrrev_b32 v%d, 2, v%d' % (vRA, vLane))
    k('v_mul_u32_u24 v%d, %d, v%d' % (vRA, ROW, vRA))
    k('v_and_b32 v%d, 3, v%d' % (vT + 3, vLane))
    k('v_lshl_add_u32 v%d, v%d, 3, v%d' % (vRA, vT + 3, vRA))
    k('s_lshl_b32 s%d, s%d, 7' % (sT + 4, sWave))
    k('v_add_u32 v%d, s%d, v%d' % (vT + 4, sT + 4, vRA))
    vUA, vXA = vT + 5, vT + 6
    k('v_and_b32 v%d, 1, v%d' % (vT + 7, vQ))
    k('v_lshrrev_b32 v%d, 1, v%d' % (vT + 8, vQ))
    k('v_lshl_add_u32 v%d, v%d, 1, v%d' % (vT + 7, vT + 7, vT + 8))
    k('v_lshlrev_b32 v%d, 18, v%d' % (vUA, vN))
    k('v_lshl_add_u32 v%d, v%d, 4, v%d' % (vUA, vT + 7, vUA))
    k('s_lshl_b32 s%d, s%d, 16' % (sT + 4, sWave))
    k('s_lshl_b32 s%d, s%d, 7' % (sT + 5, sG))
    k('s_add_u32 s%d, s%d, s%d' % (sT + 4, sT + 4, sT + 5))
    k('s_lshl_b32 s%d, s%d, 6' % (sT + 5, sHF))
    k('s_add_u32 s%d, s%d, s%d' % (sT + 4, sT + 4, sT + 5))
    k('s_add_u32 s%d, s%d, 0x4000' % (sT + 5, sT + 4))
    k('s_add_u32 s%d, s%d, 0x8000' % (sT + 6, sT + 4))
    k('s_add_u32 s%d, s%d, 0xc000' % (sT + 7, sT + 4))
    k('v_mul_u32_u24 v%d, 5120, v%d' % (vXA, vN))
    sX = 52
    k('s_lshl_b32 s%d, s%d, 10' % (sX, sWave))
    k('s_lshl_b32 s%d, s%d, 1' % (sX + 1, sG))
    k('s_add_u32 s%d, s%d, s%d' % (sX, sX, sX + 1))
    k('s_waitcnt lgkmcnt(0)')
    k('s_barrier')
    FA = vX
    for blk in range(4):
        for hh in range(2):
            k('ds_read_b64_tr_b16 %s, v%d offset:%d' % (vr(FA + 4 * blk + 2 * hh, 2), vT + 4, 32 * blk + 16 * hh * ROW))
    for hh in range(2):
        k('ds_read_b64_tr_b16 %s, v%d offset:%d' % (vr(FA + 16 + 2 * hh, 2), vRA, 512 + 16 * hh * ROW))
    Dd = vE
    for blk in range(5):
        k('s_waitcnt lgkmcnt(%d)' % (2 * (4 - blk)))
        k('v_mfma_f32_16x16x32_f16 %s, %s, %s, 0' % (vr(Dd + 8 * blk, 4), vr(FA + 4 * blk, 4), vr(vGr, 4)))
        k('v_mfma_f32_16x16x32_f16 %s, %s, %s, 0' % (vr(Dd + 8 * blk + 4, 4), vr(FA + 4 * blk, 4), vr(vGi, 4)))
    k('s_nop 1')
    O = vE + 40
    for pair in range(2):
        if pair == 1:
            pass
        for part in range(2):
            o = O + (pair * 2 + part) * 4
            for u in range(2):
                d = Dd + 8 * (2 * pair + u) + 4 * part
                k('v_cvt_pk_f16_f32 v%d, v%d, v%d' % (o + 2 * u, d, d + 1))
                k('v_cvt_pk_f16_f32 v%d, v%d, v%d' % (o + 2 * u + 1, d + 2, d + 3))
    for part in range(2):
        k('v_cvt_pk_f16_f32 v%d, v%d, v%d' % (O + 16 + part, Dd + 32 + 4 * part, Dd + 33 + 4 * part))
    for pair in range(2):
        for part in range(2):
            o = O + (pair * 2 + part) * 4
            k('v_permlane16_swap_b32 v%d, v%d' % (o, o + 2))
            k('v_permlane16_swap_b32 v%d, v%d' % (o + 1, o + 3))
            k('buffer_store_dwordx4 %s, v%d, s[%d:%d], s%d offen' % (vr(o, 4), vUA, RU, RU + 3, sT + 4 + 2 * pair + part))
    fin = k.newlabel('fin')
    k('s_cmp_lg_u32 s%d, 0' % sHF)
    k('s_cbranch_scc1 %s' % fin)
    k('s_mov_b64 exec, 0xffff')
    for pair in range(2):
        for part in range(2):
            o = O + (pair * 2 + part) * 4
            k('buffer_store_short v%d, v%d, s[%d:%d], s%d offen offset:%d' % (o, vXA, RX2, RX2 + 3, sX, 512 * pair + 256 * part))
    k('s_cmp_lg_u32 s%d, 0' % sWave)
    k('s_cbranch_scc1 %s' % fin)
    k('s_add_u32 s%d, s%d, 0x1000' % (sX + 1, sX))
    for part in range(2):
        k('buffer_store_short v%d, v%d, s[%d:%d], s%d offen offset:%d' % (O + 16 + part, vXA, RX2, RX2 + 3, sX + 1, 256 * part))
        k('buffer_store_short_d16_hi v%d, v%d, s[%d:%d], s%d offen offset:%d' % (O + 16 + part, vXA, RX2, RX2 + 3, sX + 1, 512 + 256 * part))
    k.label(fin)
    if diag:
        k('s_mov_b64 exec, -1')
        k('s_waitcnt vmcnt(0)')
        stamp_flush(k, kidx, 7, sWS, 56, 2, 0)
    k.label(done)
    k('s_endpgm')
    return dict(name=name, text=k.text(NV, NV), grid=256, block=256, lds=LDS)
```

```python
from asmlib import *
from kc import f32hex
from ka import WS_X2


def gen_kb(diag=False, kidx=1, name='kb_kernel'):
    k = K(name)
    LDS = 32768
    sWS, sWave, sR, sTB, sEB = 4, 28, 29, 30, 31
    sT = 32
    RX, RU, RX2, RM, RHC, RH, RSS = 12, 16, 20, 24, 44, 48, 52
    vB = 0
    vE = 32
    vA = 64
    vD = 96
    vXd, vXm = 116, 124
    vMd, vMm = 132, 133
    vLane, vN, vQ, vCh, vTt, vTm = 134, 135, 136, 137, 138, 139
    vRA = [140, 141, 142, 143]
    vT = 144
    NV = 176

    done = k.newlabel('done')
    k('s_cmp_ge_u32 s2, 256')
    k('s_cbranch_scc1 %s' % done)
    if diag:
        stamp(k, 0)
    k('s_load_dwordx2 s[8:9], s[0:1], %d' % KARG['x'])
    k('s_load_dwordx2 s[4:5], s[0:1], %d' % KARG['ws'])
    k('v_and_b32 v%d, 63, v0' % vLane)
    k('v_lshrrev_b32 v%d, 6, v0' % vT)
    k('v_and_b32 v%d, 15, v0' % vN)
    k('v_readfirstlane_b32 s%d, v%d' % (sWave, vT))
    k('v_lshrrev_b32 v%d, 4, v%d' % (vQ, vLane))
    k('s_and_b32 s%d, s2, 15' % sR)
    k('s_bfe_u32 s%d, s2, 0x10004' % sTB)
    k('s_lshr_b32 s%d, s2, 5' % sEB)
    k('v_lshrrev_b32 v%d, 3, v%d' % (vT, vLane))
    k('v_and_b32 v%d, 6, v%d' % (vT + 1, vT))
    k('v_and_b32 v%d, 7, v%d' % (vT + 2, vLane))
    k('v_xor_b32 v%d, v%d, v%d' % (vT + 2, vT + 2, vT + 1))
    k('v_and_b32 v%d, 3, v%d' % (vT + 3, vT))
    k('v_lshrrev_b32 v%d, 2, v%d' % (vT + 4, vT))
    k('v_lshl_add_u32 v%d, v%d, 3, v%d' % (vT + 3, vT + 4, vT + 3))
    k('v_lshlrev_b32 v%d, 7, v%d' % (vT + 3, vT + 3))
    k('v_lshl_add_u32 v%d, v%d, 4, v%d' % (vT + 3, vT + 2, vT + 3))
    vDU = [vT + 8 + p for p in range(4)]
    for p in range(4):
        hh, qh = p >> 1, p & 1
        kk = 16 * qh + 4 * hh
        k('v_add_u32 v%d, %d, v%d' % (vDU[p], kk * 128 + 4096 - 1024 * p, vT + 3))
    k('s_lshl_b32 s%d, s%d, 3' % (sT, sR))
    k('s_add_u32 s%d, s%d, s%d' % (sT, sT, sEB))
    k('s_lshl_b32 s%d, s%d, 15' % (sT, sT))
    k('s_lshl_b32 s%d, s%d, 13' % (sT + 1, sWave))
    k('s_add_u32 s%d, s%d, s%d' % (sT, sT, sT + 1))
    k('s_add_u32 s%d, s%d, 0x1000' % (sT + 2, sT))
    k('s_lshl_b32 s%d, s%d, 2' % (sT + 3, sTB))
    k('s_add_u32 s%d, s%d, s%d' % (sT + 3, sT + 3, sWave))
    k('s_lshl_b32 s%d, s%d, 8' % (sT + 4, sT + 3))
    k('s_add_u32 s%d, s%d, s%d' % (sT + 4, sT + 4, sR))
    k('v_lshlrev_b32 v%d, 4, v%d' % (vTt, vN))
    k('v_add_u32 v%d, s%d, v%d' % (vTt, sT + 4, vTt))
    k('v_sub_u32 v%d, 0x800, v%d' % (vTm, vTt))
    k('v_and_b32 v%d, 0x7ff, v%d' % (vTm, vTm))
    k('v_and_b32 v%d, 1, v%d' % (vT, vQ))
    k('v_lshrrev_b32 v%d, 1, v%d' % (vT + 1, vQ))
    k('v_lshl_add_u32 v%d, v%d, 1, v%d' % (vCh, vT, vT + 1))
    k('v_lshlrev_b32 v%d, 11, v%d' % (vT + 4, vTt))
    k('v_lshl_add_u32 v%d, v%d, 4, v%d' % (vT + 4, vCh, vT + 4))
    k('v_lshlrev_b32 v%d, 11, v%d' % (vT + 5, vTm))
    k('v_lshlrev_b32 v%d, 4, v%d' % (vT + 6, vCh))
    k('v_sub_u32 v%d, v%d, v%d' % (vT + 5, vT + 5, vT + 6))
    k('v_add_u32 v%d, 48, v%d' % (vT + 5, vT + 5))
    k('s_lshl_b32 s%d, s%d, 7' % (sT + 5, sEB))
    k('s_sub_u32 s%d, %d, s%d' % (sT + 6, 2048 - 128, sT + 5))
    k('v_lshlrev_b32 v%d, 2, v%d' % (vT + 6, vTt))
    k('v_lshlrev_b32 v%d, 2, v%d' % (vT + 7, vTm))
    k('s_add_u32 s%d, s%d, 1' % (sT + 7, sEB))
    k('v_mov_b32 v%d, s%d' % (vT + 12, sT + 7))
    k('v_cmp_eq_u32 vcc, 0, v%d' % vN)
    k('s_mul_i32 s%d, s%d, 5120' % (sT + 7, sR))
    k('v_lshlrev_b32 v%d, 4, v%d' % (vT + 13, vQ))
    k('v_cndmask_b32 v%d, 9, v%d, vcc' % (vT + 12, vT + 12))
    k('v_lshl_add_u32 v%d, v%d, 9, v%d' % (vT + 12, vT + 12, vT + 13))
    k('s_waitcnt lgkmcnt(0)')
    srd(k, RU, sWS, 0x400000 + 4096, WS_U + 0x10000000 if False else 0)
    k('s_sub_u32 s%d, s%d, 0x1000' % (RU, RU))
    k('s_subb_u32 s%d, s%d, 0' % (RU + 1, RU + 1))
    assert WS_U == 0
    for half in range(2):
        k('s_add_u32 m0, s%d, %d' % (sT + 1, 4096 * half))
        k('s_nop 0')
        for p in range(4):
            k('buffer_load_dwordx4 v%d, s[%d:%d], s%d offen offset:%d lds' % (vDU[p], RU, RU + 3, sT + 2 * half, 1024 * p))
    srd(k, RX2, sWS, 16 * 10 * 512, WS_X2)
    k('s_mov_b32 s%d, 0x00030003' % (sT + 8))
    k('s_mov_b32 s%d, 0x00030003' % (sT + 9))
    k('s_mov_b64 exec, s[%d:%d]' % (sT + 8, sT + 9))
    for ks in range(8):
        k('buffer_load_dwordx4 %s, v%d, s[%d:%d], s%d offen offset:%d' % (vr(vE + 4 * ks, 4), vT + 12, RX2, RX2 + 3, sT + 7, 64 * ks))
    k('s_mov_b64 exec, -1')
    srd(k, RX, 8, 2048 * 2048)
    srd(k, RM, sWS, 8192, WS_XM)
    for be in range(2):
        k('buffer_load_dwordx4 %s, v%d, s[%d:%d], s%d offen offset:%d' % (vr(vXd + 4 * be, 4), vT + 4, RX, RX + 3, sT + 5, 64 * be))
        k('buffer_load_dwordx4 %s, v%d, s[%d:%d], s%d offen offset:%d' % (vr(vXm + 4 * be, 4), vT + 5, RX, RX + 3, sT + 6, 64 * (1 - be)))
    k('buffer_load_dword v%d, v%d, s[%d:%d], 0 offen' % (vMd, vT + 6, RM, RM + 3))
    k('buffer_load_dword v%d, v%d, s[%d:%d], 0 offen' % (vMm, vT + 7, RM, RM + 3))
    if diag:
        stamp(k, 1)
    srd(k, RHC, sWS, 0x400000, WS_HC)
    srd(k, RH, sWS, 0x400000, WS_H)
    srd(k, RSS, sWS, 2048 * 64, WS_SS)
    A0, ST, C0, C1, S0, S1, BS, B32 = vT, vT + 1, vT + 2, vT + 3, vT + 4, vT + 5, vT + 6, vT + 7
    k('v_cvt_f32_u32 v%d, v%d' % (ST, vTt))
    k('v_mul_f32 v%d, %s, v%d' % (ST, f32hex(1 / 2048.), ST))
    k('v_cvt_f32_u32 v%d, v%d' % (BS, vQ))
    k('v_mul_f32 v%d, v%d, v%d' % (BS, BS, ST))
    k('v_mul_f32 v%d, %s, v%d' % (BS, f32hex(8.), BS))
    k('v_mul_f32 v%d, %s, v%d' % (B32, f32hex(32.), ST))
    k('v_fract_f32 v%d, v%d' % (B32, B32))
    for k4 in range(4):
        k('v_fract_f32 v%d, v%d' % (A0, BS))
        if k4 < 3:
            k('v_add_f32 v%d, v%d, v%d' % (BS, A0, B32))
        for p in range(4):
            k('v_cos_f32 v%d, v%d' % (C0, A0))
            k('v_sin_f32 v%d, -v%d' % (S0, A0))
            k('v_add_f32 v%d, v%d, v%d' % (A0, A0, ST))
            k('v_cos_f32 v%d, v%d' % (C1, A0))
            k('v_sin_f32 v%d, -v%d' % (S1, A0))
            k('v_add_f32 v%d, v%d, v%d' % (A0, A0, ST))
            k('v_cvt_pk_f16_f32 v%d, v%d, v%d' % (vB + 4 * k4 + p, C0, C1))
            k('v_cvt_pk_f16_f32 v%d, v%d, v%d' % (vB + 16 + 4 * k4 + p, S0, S1))
    k('v_lshrrev_b32 v%d, 2, v%d' % (vT, vLane))
    k('v_and_b32 v%d, 6, v%d' % (vT + 1, vT))
    k('v_and_b32 v%d, 3, v%d' % (vT + 2, vLane))
    k('v_lshlrev_b32 v%d, 3, v%d' % (vT + 2, vT + 2))
    k('v_lshl_add_u32 v%d, v%d, 7, v%d' % (vT + 2, vT, vT + 2))
    for b in range(4):
        k('v_xor_b32 v%d, %d, v%d' % (vT + 3, 2 * b, vT + 1))
        k('v_lshl_add_u32 v%d, v%d, 4, v%d' % (vRA[b], vT + 3, vT + 2))
    if diag:
        stamp(k, 2)
    k('s_waitcnt vmcnt(14)')
    k('s_barrier')
    if diag:
        stamp(k, 3)

    def reads(ks):
        for b in range(4):
            for hh in range(2):
                k('ds_read_b64_tr_b16 %s, v%d offset:%d' % (vr(vA + 16 * (ks & 1) + 4 * b + 2 * hh, 2), vRA[b], ks * 4096 + hh * 2048))

    reads(0)
    k('s_waitcnt vmcnt(6)')
    for ks in range(8):
        if ks < 7:
            reads(ks + 1)
        c = '0' if ks == 0 else None
        k('v_mfma_f32_16x16x32_f16 %s, %s, %s, %s' % (vr(vD + 16, 4), vr(vE + 4 * ks, 4), vr(vB + 4 * ks, 4), c or vr(vD + 16, 4)))
        for b in range(4):
            k('s_waitcnt lgkmcnt(%d)' % ((8 if ks < 7 else 0) + 2 * (3 - b)))
            k('v_mfma_f32_16x16x32_f16 %s, %s, %s, %s' % (vr(vD + 4 * b, 4), vr(vA + 16 * (ks & 1) + 4 * b, 4), vr(vB + 4 * ks, 4), c or vr(vD + 4 * b, 4)))
    if diag:
        stamp(k, 4)
    vOd, vOm, vSa, vBp, vBm = vT, vT + 1, vT + 2, vT + 3, vT + 4
    vY = vT + 6

    def tau_addr(dst, vt, ch_expr_reg):
        k('v_bfe_u32 v%d, v%d, 1, 3' % (vY, vt))
        k('v_lshlrev_b32 v%d, 19, v%d' % (dst, vY))
        k('v_and_b32 v%d, 1, v%d' % (vY, vt))
        k('v_lshl_add_u32 v%d, v%d, 13, v%d' % (dst, vY, dst))
        k('v_lshrrev_b32 v%d, 8, v%d' % (vY, vt))
        k('v_lshl_add_u32 v%d, v%d, 10, v%d' % (dst, vY, dst))
        k('v_bfe_u32 v%d, v%d, 4, 4' % (vY, vt))
        k('v_lshl_add_u32 v%d, v%d, 4, v%d' % (dst, vY, dst))
        k('v_lshl_add_u32 v%d, v%d, 8, v%d' % (dst, ch_expr_reg, dst))

    tau_addr(vOd, vTt, vCh)
    k('v_sub_u32 v%d, 3, v%d' % (vY + 1, vCh))
    tau_addr(vOm, vTm, vY + 1)
    k('s_lshl_b32 s%d, s%d, 15' % (sT, sEB))
    k('s_add_u32 s%d, s%d, 0x4000' % (sT + 1, sT))
    k('s_sub_u32 s%d, 0x%x, s%d' % (sT + 2, 31 * 16384, sT))
    k('s_sub_u32 s%d, s%d, 0x4000' % (sT + 3, sT + 2))
    k('v_cmp_gt_u32 vcc, 32, v%d' % vLane)
    k('v_lshrrev_b32 v%d, 5, v%d' % (vY + 1, vLane))
    k('s_nop 0')
    k('v_cndmask_b32 v%d, v%d, v%d, vcc' % (vY, vTm, vTt))
    k('v_and_b32 v%d, 15, v%d' % (vSa, vY))
    k('v_lshlrev_b32 v%d, 13, v%d' % (vSa, vSa))
    k('v_lshrrev_b32 v%d, 4, v%d' % (vY, vY))
    k('v_lshl_add_u32 v%d, v%d, 6, v%d' % (vSa, vY, vSa))
    k('v_lshl_add_u32 v%d, v%d, 5, v%d' % (vSa, vY + 1, vSa))
    k('s_lshl_b32 s%d, s%d, 2' % (sT + 4, sEB))
    k('v_lshlrev_b32 v%d, 2, v%d' % (vBm, vN))
    k('v_lshlrev_b32 v%d, 1, v%d' % (vY, vQ))
    k('v_lshrrev_b32 v%d, v%d, %s' % (vY, vY, 'v%d' % (vY + 1)) if False else 'v_mov_b32 v%d, 0x1e' % (vY + 1))
    k('v_lshrrev_b32 v%d, v%d, v%d' % (vY, vY, vY + 1))
    k('v_and_b32 v%d, 3, v%d' % (vY, vY))
    k('v_lshl_add_u32 v%d, v%d, 6, v%d' % (vBp, vY, vBm))
    k('v_cmp_gt_u32 vcc, 16, v%d' % vLane)
    for be in range(2):
        for i in range(4):
            k('v_permlane16_swap_b32 v%d, v%d' % (vD + 4 * be + i, vD + 8 + 4 * be + i))
    vF = vT + 8
    k('v_cndmask_b32 v%d, v%d, v%d, vcc' % (vF, vD, vD + 4))
    k('v_cndmask_b32 v%d, v%d, v%d, vcc' % (vF + 1, vD + 4, vD + 16))
    k('ds_bpermute_b32 v%d, v%d, v%d' % (vF, vBp, vF))
    k('ds_bpermute_b32 v%d, v%d, v%d' % (vF + 1, vBp, vF + 1))
    k('ds_bpermute_b32 v%d, v%d, v%d' % (vF + 2, vBm, vD + 17))
    k('s_waitcnt vmcnt(0) lgkmcnt(0)')
    vMu = vT + 12
    k('v_add_f32 v%d, v%d, v%d' % (vMu, vMd, vF + 2))
    k('v_add_f32 v%d, v%d, v%d' % (vMu + 2, vMm, vF + 2))
    vS = vT + 16
    W = vB
    for mir in range(2):
        for be in range(2):
            el = [vD + 4 * be + i for i in range(4)] + [vD + 8 + 4 * be + i for i in range(4)]
            if mir:
                el = [vF + be] + el[:0:-1]
            X = (vXm if mir else vXd) + 4 * be
            w = W + 16 * (2 * mir + be)
            for i in range(4):
                k('v_lshlrev_b32 v%d, 16, v%d' % (w + 2 * i, X + i))
                k('v_and_b32 v%d, 0xffff0000, v%d' % (w + 2 * i + 1, X + i))
            for i in range(8):
                k('v_add_f32 v%d, v%d, v%d' % (w + i, w + i, el[i]))
            for i in range(4):
                k('v_cvt_pk_bf16_f32 v%d, v%d, v%d' % (X + i, w + 2 * i, w + 2 * i + 1))
            k('buffer_store_dwordx4 %s, v%d, s[%d:%d], s%d offen' % (vr(X, 4), vOm if mir else vOd, RH, RH + 3, sT + 2 * mir + be))
            for i in range(4):
                k('v_lshlrev_b32 v%d, 16, v%d' % (w + 2 * i, X + i))
                k('v_and_b32 v%d, 0xffff0000, v%d' % (w + 2 * i + 1, X + i))
            for i in range(4):
                k('v_pk_add_f32 %s, %s, %s op_sel_hi:[1,0] neg_lo:[0,1] neg_hi:[0,1]' % (vr(w + 2 * i, 2), vr(w + 2 * i, 2), vr(vMu + 2 * mir, 2)))
            for i in range(4):
                k('v_cvt_pk_bf16_f32 v%d, v%d, v%d' % (w + 8 + i, w + 2 * i, w + 2 * i + 1))
            k('buffer_store_dwordx4 %s, v%d, s[%d:%d], s%d offen' % (vr(w + 8, 4), vOm if mir else vOd, RHC, RHC + 3, sT + 2 * mir + be))
            s = vS + 2 * mir
            for i in range(4):
                if be == 0 and i == 0:
                    k('v_pk_mul_f32 %s, %s, %s' % (vr(s, 2), vr(w, 2), vr(w, 2)))
                else:
                    k('v_pk_fma_f32 %s, %s, %s, %s' % (vr(s, 2), vr(w + 2 * i, 2), vr(w + 2 * i, 2), vr(s, 2)))
    k('v_add_f32 v%d, v%d, v%d' % (vS, vS, vS + 1))
    k('v_add_f32 v%d, v%d, v%d' % (vS + 2, vS + 2, vS + 3))
    k('s_nop 1')
    k('v_permlane32_swap_b32 v%d, v%d' % (vS, vS + 2))
    k('v_add_f32 v%d, v%d, v%d' % (vS, vS, vS + 2))
    k('v_mov_b32 v%d, v%d' % (vS + 1, vS))
    k('s_nop 1')
    k('v_permlane16_swap_b32 v%d, v%d' % (vS, vS + 1))
    k('v_add_f32 v%d, v%d, v%d' % (vS, vS, vS + 1))
    k('buffer_store_dword v%d, v%d, s[%d:%d], s%d offen' % (vS, vSa, RSS, RSS + 3, sT + 4))
    if diag:
        k('s_waitcnt vmcnt(0)')
        stamp_flush(k, kidx, 6, sWS, 56, 2, 0)
    k.label(done)
    k('s_endpgm')
    return dict(name=name, text=k.text(NV, NV), grid=256, block=256, lds=LDS)
```

```python
from asmlib import *

LOG2E = 1.4426950408889634


def f32hex(x):
    import struct
    return '0x%08x' % struct.unpack('<I', struct.pack('<f', x))[0]


def gen_kc(NW=4, NS=5, diag=False, kidx=2, nomfma=False, nodma=False, nolds=False, rd_end=0.7, name='kc_kernel'):
    k = K(name)
    TB = 16 // (NW // 2)
    NACC = TB * 7 * 4
    MB = NACC
    SLOT = 16384 + 7168 + 16 + 7168
    GOFF = 16384
    UOFF = 7184
    RS = NS * SLOT
    LDS = RS + 2048
    TD = 16 // NW
    WROWS = 64 // NW
    WCH = WROWS * 14
    WD = (WCH + 63) // 64
    WLAST = WCH - 64 * (WD - 1)
    D = TD + WD
    FSET = (TB + 7) * 4
    vTok0, vW0, vW60, vTok, vW, vW6, vDT = [MB + i for i in range(7)]
    vDW = [MB + 7 + i for i in range(4)]
    vLane = MB + 11
    vT = MB + 12
    sWS, sWave, sRT, sCT, sTO, sWO, sA, sB, sCnt, sMT, sMW = 4, 28, 29, 30, 31, 32, 33, 34, 35, 36, 37
    sEx = 38
    s4k = 40
    sT = 41
    RT, RW, RO, RSS = 12, 16, 20, 24

    def acc(j, b):
        return (j * 7 + b) * 4

    def fT(s, j):
        return s * FSET + j * 4

    def fW(s, b):
        return s * FSET + TB * 4 + b * 4

    done = k.newlabel('done')
    k('s_cmp_ge_u32 s2, 256')
    k('s_cbranch_scc1 %s' % done)
    if diag:
        stamp(k, 0)
    k('s_load_dwordx4 s[8:11], s[0:1], %d' % KARG['wg'])
    k('s_load_dwordx2 s[4:5], s[0:1], %d' % KARG['ws'])
    k('v_and_b32 v%d, 63, v0' % vLane)
    k('v_lshrrev_b32 v%d, 6, v0' % vT)
    k('v_mov_b32 v%d, v0' % (vT + 8))
    k('v_readfirstlane_b32 s%d, v%d' % (sWave, vT))
    k('s_and_b32 s%d, s2, 7' % sT)
    k('s_lshr_b32 s%d, s2, 3' % (sT + 1))
    k('s_lshr_b32 s%d, s%d, 2' % (sRT, sT + 1))
    k('s_and_b32 s%d, s%d, 3' % (sT + 1, sT + 1))
    k('s_lshl_b32 s%d, s%d, 2' % (sT, sT))
    k('s_add_u32 s%d, s%d, s%d' % (sCT, sT, sT + 1))
    k('s_and_b32 s%d, s%d, 1' % (sT + 2, sWave))
    k('s_lshr_b32 s%d, s%d, 1' % (sT + 3, sWave))
    k('v_lshlrev_b32 v%d, 4, v%d' % (vT, vLane))
    k('s_mul_i32 s%d, s%d, %d' % (sMT, sWave, TD * 1024))
    k('v_add_u32 v%d, s%d, v%d' % (vDT, sMT, vT))
    k('s_mul_i32 s%d, s%d, %d' % (sT + 4, sT + 3, TB * 1024))
    k('v_add_u32 v%d, s%d, v%d' % (vTok0, sT + 4, vT))
    k('v_lshrrev_b32 v%d, 2, v%d' % (vT + 1, vLane))
    k('v_mul_u32_u24 v%d, 224, v%d' % (vT + 1, vT + 1))
    k('s_mul_i32 s%d, s%d, 112' % (sT + 4, sT + 2))
    k('s_add_u32 s%d, s%d, %d' % (sT + 4, sT + 4, GOFF))
    k('v_add_u32 v%d, s%d, v%d' % (vT + 1, sT + 4, vT + 1))
    k('v_and_b32 v%d, 3, v%d' % (vT + 2, vLane))
    k('v_lshl_add_u32 v%d, v%d, 3, v%d' % (vW0, vT + 2, vT + 1))
    k('v_lshrrev_b32 v%d, 1, v%d' % (vT + 3, vT + 2))
    k('v_lshl_add_u32 v%d, v%d, 3, v%d' % (vW60, vT + 3, vT + 1))
    k('v_and_b32 v%d, 1, v%d' % (vT + 3, vT + 2))
    k('v_mul_u32_u24 v%d, %d, v%d' % (vT + 3, UOFF, vT + 3))
    k('v_add3_u32 v%d, v%d, v%d, %d' % (vW60, vW60, vT + 3, 48))
    k('v_add_u32 v%d, 48, v%d' % (vW60, vW60))
    k('s_mul_i32 s%d, s%d, %d' % (sT + 4, sT + 3, WROWS))
    k('s_mul_i32 s%d, s%d, 224' % (sT + 5, sCT))
    for i in range(WD):
        k('v_add_u32 v%d, %d, v%d' % (vT + 1, 64 * i, vLane))
        k('v_mul_u32_u24 v%d, 4682, v%d' % (vT + 2, vT + 1))
        k('v_lshrrev_b32 v%d, 16, v%d' % (vT + 2, vT + 2))
        k('v_mul_u32_u24 v%d, 14, v%d' % (vT + 3, vT + 2))
        k('v_sub_u32 v%d, v%d, v%d' % (vT + 3, vT + 1, vT + 3))
        k('v_add_u32 v%d, s%d, v%d' % (vT + 2, sT + 4, vT + 2))
        k('v_and_b32 v%d, 3, v%d' % (vT + 4, vT + 2))
        k('v_bfe_u32 v%d, v%d, 2, 2' % (vT + 5, vT + 2))
        k('v_lshl_add_u32 v%d, v%d, 3, v%d' % (vT + 4, vT + 5, vT + 4))
        k('v_bfe_u32 v%d, v%d, 4, 1' % (vT + 5, vT + 2))
        k('v_lshl_add_u32 v%d, v%d, 2, v%d' % (vT + 4, vT + 5, vT + 4))
        k('v_mul_u32_u24 v%d, 7168, v%d' % (vT + 4, vT + 4))
        k('v_lshl_add_u32 v%d, v%d, 4, v%d' % (vT + 4, vT + 3, vT + 4))
        k('v_add_u32 v%d, s%d, v%d' % (vT + 4, sT + 5, vT + 4))
        k('v_add_u32 v%d, %d, v%d' % (vDW[i], 4096 - 1024 * i, vT + 4))
    k('s_mul_i32 s%d, s%d, %d' % (sMW, sT + 2, UOFF))
    k('s_mul_i32 s%d, s%d, %d' % (sT + 4, sT + 3, WROWS * 224))
    k('s_add_u32 s%d, s%d, s%d' % (sMW, sMW, sT + 4))
    k('s_add_u32 s%d, s%d, %d' % (sMW, sMW, GOFF))
    if WLAST >= 32:
        k('s_mov_b32 s%d, -1' % sEx)
        k('s_mov_b32 s%d, 0x%x' % (sEx + 1, (1 << (WLAST - 32)) - 1))
    else:
        k('s_mov_b32 s%d, 0x%x' % (sEx, (1 << WLAST) - 1))
        k('s_mov_b32 s%d, 0' % (sEx + 1))
    k('s_movk_i32 s%d, 0x1000' % s4k)
    k('s_waitcnt lgkmcnt(0)')
    if diag:
        stamp(k, 1)
    k('s_lshl_b32 s%d, s%d, 19' % (sT, sRT))
    k('s_add_u32 s%d, s%d, 0x%x' % (sT, sT, WS_HC))
    k('s_add_u32 s%d, s4, s%d' % (RT, sT))
    k('s_addc_u32 s%d, s5, 0' % (RT + 1))
    k('s_mov_b32 s%d, 0x80000' % (RT + 2))
    k('s_mov_b32 s%d, 0x20000' % (RT + 3))
    k('s_cmp_eq_u32 s%d, 0' % (sT + 2))
    k('s_cselect_b32 s%d, s8, s10' % RW)
    k('s_cselect_b32 s%d, s9, s11' % (RW + 1))
    k('s_sub_u32 s%d, s%d, 0x1000' % (RW, RW))
    k('s_subb_u32 s%d, s%d, 0' % (RW + 1, RW + 1))
    k('s_mov_b32 s%d, 0x%x' % (RW + 2, 1024 * 7168 + 4096))
    k('s_mov_b32 s%d, 0x20000' % (RW + 3))
    srd(k, RO, sWS, 2048 * 3584 * 2, WS_ACT)
    srd(k, RSS, sWS, 2048 * 64, WS_SS)
    k('s_mov_b32 s%d, 0' % sTO)
    k('s_mov_b32 s%d, 0' % sWO)

    def dma_groups(slot_sgpr=None, slot_imm=None):
        g = []
        if slot_sgpr is not None:
            first = ['s_add_u32 m0, s%d, s%d' % (slot_sgpr, sMT)]
        else:
            first = ['s_add_u32 m0, s%d, %d' % (sMT, slot_imm)]
        for i in range(TD):
            ins = 'buffer_load_dwordx4 v%d, s[%d:%d], s%d offen offset:%d lds' % (vDT, RT, RT + 3, sTO, 1024 * i)
            if i == 0:
                g.append(first + ['s_nop 0', ins])
            elif i == TD - 1:
                g.append([ins, 's_add_u32 s%d, s%d, 0x4000' % (sTO, sTO)])
            else:
                g.append([ins])
        if slot_sgpr is not None:
            first = ['s_add_u32 m0, s%d, s%d' % (slot_sgpr, sMW)]
        else:
            first = ['s_add_u32 m0, s%d, %d' % (sMW, slot_imm)]
        for i in range(WD):
            ins = 'buffer_load_dwordx4 v%d, s[%d:%d], s%d offen offset:%d lds' % (vDW[i], RW, RW + 3, sWO, 1024 * i)
            if i == 0:
                g.append(first + ['s_nop 0', ins])
            elif i == WD - 1:
                g.append(['s_mov_b64 exec, s[%d:%d]' % (sEx, sEx + 1), ins, 's_mov_b64 exec, -1',
                          's_add_u32 s%d, s%d, 0x%x' % (sWO, sWO, 32 * 7168)])
            else:
                g.append([ins])
        return g

    def read_groups(s):
        g = []
        g.append(['ds_read_b128 %s, v%d' % (ar(fT(s, 0), 4), vTok)])
        for b in range(7):
            for hh in range(2):
                if b < 6:
                    off = hh * 3584 + 32 * (b % 3) + (UOFF if b >= 3 else 0)
                    g.append(['ds_read_b64_tr_b16 %s, v%d offset:%d' % (ar(fW(s, b) + 2 * hh, 2), vW, off)])
                else:
                    g.append(['ds_read_b64_tr_b16 %s, v%d offset:%d' % (ar(fW(s, b) + 2 * hh, 2), vW6, hh * 3584)])
        for j in range(1, TB):
            g.append(['ds_read_b128 %s, v%d offset:%d' % (ar(fT(s, j), 4), vTok, 1024 * j)])
        return g

    for grp in dma_groups(slot_imm=0):
        for l in grp:
            k(l)
    skip = k.newlabel('nostat')
    k('s_lshl_b32 s%d, s%d, 14' % (sT, sRT))
    k('v_lshlrev_b32 v%d, 6, v%d' % (vT, vT + 8))
    if NW > 4:
        k('s_cmp_ge_u32 s%d, 4' % sWave)
        k('s_cbranch_scc1 %s' % skip)
    for i in range(4):
        k('buffer_load_dwordx4 v[%d:%d], v%d, s[%d:%d], s%d offen offset:%d' % (16 + 4 * i, 19 + 4 * i, vT, RSS, RSS + 3, sT, 16 * i))
    if NW > 4:
        k.label(skip)
    for st in range(1, NS):
        for grp in dma_groups(slot_imm=st * SLOT):
            for l in grp:
                k(l)
    if diag:
        stamp(k, 2)
    for r in range(NACC):
        if not 16 <= r < 32:
            k('v_mov_b32 v%d, 0' % r)
    if diag:
        stamp(k, 3)
    k('s_waitcnt vmcnt(%d)' % ((NS - 1) * D))
    if diag:
        stamp(k, 4)
    skip = k.newlabel('nostat')
    if NW > 4:
        k('s_cmp_ge_u32 s%d, 4' % sWave)
        k('s_cbranch_scc1 %s' % skip)
    for st in (8, 4, 2, 1):
        for i in range(st):
            k('v_add_f32 v%d, v%d, v%d' % (16 + i, 16 + i, 16 + i + st))
    k('v_mul_f32 v16, %s, v16' % f32hex(1.0 / 1024))
    k('v_cvt_pk_bf16_f32 v16, v16, v16')
    k('v_lshlrev_b32 v16, 16, v16')
    k('v_add_f32 v16, %s, v16' % f32hex(1e-5))
    k('v_cvt_pk_bf16_f32 v16, v16, v16')
    k('v_lshlrev_b32 v16, 16, v16')
    k('v_sqrt_f32 v16, v16')
    k('s_nop 0')
    k('v_cvt_pk_bf16_f32 v16, v16, v16')
    k('v_lshlrev_b32 v16, 16, v16')
    k('v_rcp_f32 v18, v16')
    k('v_mul_f32 v19, v16, v16')
    k('v_mul_f32 v18, %s, v18' % f32hex(-LOG2E))
    k('v_lshlrev_b32 v17, 3, v%d' % (vT + 8))
    k('ds_write_b64 v17, v[18:19] offset:0' if False else 'v_add_u32 v17, %d, v17' % RS)
    k('ds_write_b64 v17, v[18:19]')
    k('s_waitcnt lgkmcnt(0)')
    if NW > 4:
        k.label(skip)
    for r in range(16, 32):
        k('v_mov_b32 v%d, 0' % r)
    k('s_barrier')
    k('v_mov_b32 v%d, v%d' % (vTok, vTok0))
    k('v_mov_b32 v%d, v%d' % (vW, vW0))
    k('v_mov_b32 v%d, v%d' % (vW6, vW60))
    for grp in read_groups(0):
        for l in grp:
            k(l)
    k('s_mov_b32 s%d, 0' % sA)
    k('s_mov_b32 s%d, %d' % (sB, SLOT))
    k('v_add_u32 v%d, s%d, v%d' % (vTok, sB, vTok0))
    k('v_add_u32 v%d, s%d, v%d' % (vW, sB, vW0))
    k('v_add_u32 v%d, s%d, v%d' % (vW6, sB, vW60))
    k('s_mov_b32 s%d, 0' % sCnt)
    if diag:
        stamp(k, 5)
    loop = k.newlabel('loop')
    k('.p2align 6')
    k.label(loop)
    for sub in range(2):
        cur, nxt = sub, 1 - sub
        k('s_waitcnt vmcnt(%d) lgkmcnt(0)' % ((NS - 2) * D))
        k('s_barrier')
        main = []
        for j in range(TB):
            for b in range(7):
                a = acc(j, b)
                if nomfma:
                    main.append('s_nop 0')
                else:
                    main.append('v_mfma_f32_16x16x32_bf16 %s, %s, %s, %s' % (vr(a, 4), ar(fW(cur, b), 4), ar(fT(cur, j), 4), vr(a, 4)))
        rg = [] if nolds else read_groups(nxt)
        dg = [] if nodma else dma_groups(slot_sgpr=sA)
        n = len(main)
        slots = [[] for _ in range(n)]
        for i, g in enumerate(rg):
            slots[int(i * n * rd_end / len(rg))].append(g)
        for i, g in enumerate(dg):
            slots[min(n - 1, int((i + 0.5) * (n - 4) / len(dg)))].append(g)
        slots[n - 3].append(['s_mov_b32 s%d, s%d' % (sA, sB),
                             's_add_u32 s%d, s%d, %d' % (sB, sB, SLOT)])
        slots[n - 2].append(['s_cmp_eq_u32 s%d, %d' % (sB, NS * SLOT),
                             's_cselect_b32 s%d, 0, s%d' % (sB, sB)])
        slots[n - 1].append(['v_add_u32 v%d, s%d, v%d' % (vTok, sB, vTok0),
                             'v_add_u32 v%d, s%d, v%d' % (vW, sB, vW0),
                             'v_add_u32 v%d, s%d, v%d' % (vW6, sB, vW60)])
        for i in range(n):
            k(main[i])
            for g in slots[i]:
                for l in g:
                    k(l)
    k('s_add_u32 s%d, s%d, 1' % (sCnt, sCnt))
    k('s_cmp_lt_u32 s%d, 16' % sCnt)
    k('s_cbranch_scc1 %s' % loop)

    if diag:
        stamp(k, 6)
    vN, vQ, vA1, vA2, vA3, vR1, vR2 = vT, vT + 1, vT + 2, vT + 3, vT + 4, vT + 5, vT + 6
    vC = vT + 8
    vX = vT + 14
    assert vC % 2 == 0 and vX % 2 == 0 and vX + 4 <= MB + 32
    k('s_waitcnt lgkmcnt(0)')
    k('v_and_b32 v%d, 15, v%d' % (vN, vLane))
    k('v_lshrrev_b32 v%d, 4, v%d' % (vQ, vLane))
    k('s_mul_i32 s%d, s%d, 14' % (sT, sCT))
    k('s_mul_i32 s%d, s%d, 7' % (sT + 4, sT + 2))
    k('s_add_u32 s%d, s%d, s%d' % (sT, sT, sT + 4))
    k('s_lshl_b32 s%d, s%d, 4' % (sT + 4, sRT))
    k('s_mul_i32 s%d, s%d, %d' % (sT + 5, sT + 3, TB))
    k('s_add_u32 s%d, s%d, s%d' % (sT + 4, sT + 4, sT + 5))
    k('s_lshr_b32 s%d, s%d, 3' % (sT + 5, sT + 4))
    k('s_mul_i32 s%d, s%d, %d' % (sT + 5, sT + 5, 112 * 8192))
    k('s_and_b32 s%d, s%d, 7' % (sT + 4, sT + 4))
    k('s_lshl_b32 s%d, s%d, 10' % (sT + 4, sT + 4))
    k('s_add_u32 s%d, s%d, s%d' % (sT + 5, sT + 5, sT + 4))

    def chunk_addr(dst, vfc_off, vtb_off):
        k('v_add_u32 v%d, s%d, v%d' % (vX, sT, vfc_off))
        k('v_lshrrev_b32 v%d, 2, v%d' % (vX + 1, vX))
        k('v_lshlrev_b32 v%d, 13, v%d' % (vX + 1, vX + 1))
        k('v_and_b32 v%d, 3, v%d' % (vX, vX))
        k('v_lshl_add_u32 v%d, v%d, 4, v%d' % (vX, vX, vN))
        k('v_lshl_add_u32 v%d, v%d, 4, v%d' % (vX, vX, vX + 1))
        if vtb_off is not None:
            k('v_lshl_add_u32 v%d, v%d, 10, v%d' % (vX, vtb_off, vX))
        k('v_add_u32 v%d, s%d, v%d' % (dst, sT + 5, vX))

    k('v_and_b32 v%d, 1, v%d' % (vR1, vQ))
    k('v_lshrrev_b32 v%d, 1, v%d' % (vR2, vQ))
    k('v_lshl_add_u32 v%d, v%d, 1, v%d' % (vX + 2, vR1, vR2))
    chunk_addr(vA1, vX + 2, None)
    k('v_add_u32 v%d, 4, v%d' % (vX + 2, vR2))
    chunk_addr(vA2, vX + 2, vR1)
    k('v_mov_b32 v%d, 6' % (vX + 2))
    chunk_addr(vA3, vX + 2, vQ)
    k('s_mul_i32 s%d, s%d, %d' % (sT + 4, sT + 3, TB * 128))
    k('s_add_u32 s%d, s%d, %d' % (sT + 4, sT + 4, RS))
    k('v_lshlrev_b32 v%d, 3, v%d' % (vX, vN))
    k('v_lshl_add_u32 v%d, v%d, 7, v%d' % (vR2, vR1, vX))
    k('v_add_u32 v%d, s%d, v%d' % (vR1, sT + 4, vX))
    k('v_add_u32 v%d, s%d, v%d' % (vR2, sT + 4, vR2))

    def swiglu(G, U, C):
        X = vX
        k('v_pk_mul_f32 %s, %s, %s op_sel_hi:[1,0]' % (vr(X, 2), vr(G, 2), vr(C, 2)))
        k('v_pk_mul_f32 %s, %s, %s op_sel_hi:[1,0]' % (vr(X + 2, 2), vr(G + 2, 2), vr(C, 2)))
        for i in range(4):
            k('v_exp_f32 v%d, v%d' % (X + i, X + i))
        k('v_pk_mul_f32 %s, %s, %s' % (vr(G, 2), vr(G, 2), vr(U, 2)))
        k('v_pk_fma_f32 %s, %s, %s, %s op_sel:[0,1,1] op_sel_hi:[1,1,1]' % (vr(X, 2), vr(X, 2), vr(C, 2), vr(C, 2)))
        k('v_pk_fma_f32 %s, %s, %s, %s op_sel:[0,1,1] op_sel_hi:[1,1,1]' % (vr(X + 2, 2), vr(X + 2, 2), vr(C, 2), vr(C, 2)))
        for i in range(4):
            k('v_rcp_f32 v%d, v%d' % (X + i, X + i))
        k('v_pk_mul_f32 %s, %s, %s' % (vr(G + 2, 2), vr(G + 2, 2), vr(U + 2, 2)))
        k('v_pk_mul_f32 %s, %s, %s' % (vr(G, 2), vr(G, 2), vr(X, 2)))
        k('v_pk_mul_f32 %s, %s, %s' % (vr(G + 2, 2), vr(G + 2, 2), vr(X + 2, 2)))

    def store(data, va, j):
        so = '0' if j < 4 else 's%d' % s4k
        k('buffer_store_dwordx4 %s, v%d, s[%d:%d], %s offen offset:%d' % (vr(data, 4), va, RO, RO + 3, so, 1024 * (j % 4)))

    for jp in range(0, TB, 2):
        k('ds_read_b64 %s, v%d offset:%d' % (vr(vC, 2), vR1, 128 * jp))
        k('ds_read_b64 %s, v%d offset:%d' % (vr(vC + 2, 2), vR1, 128 * (jp + 1)))
        k('ds_read_b64 %s, v%d offset:%d' % (vr(vC + 4, 2), vR2, 128 * jp))
        A6, B6 = acc(jp, 6), acc(jp + 1, 6)
        for i in range(4):
            k('v_permlane16_swap_b32 v%d, v%d' % (A6 + i, B6 + i))
        k('s_waitcnt lgkmcnt(0)')
        for dj in range(2):
            j = jp + dj
            for b in range(3):
                swiglu(acc(j, b), acc(j, b + 3), vC + 2 * dj)
            P = acc(j, 3)
            k('v_cvt_pk_bf16_f32 v%d, v%d, v%d' % (P, acc(j, 0), acc(j, 0) + 1))
            k('v_cvt_pk_bf16_f32 v%d, v%d, v%d' % (P + 1, acc(j, 0) + 2, acc(j, 0) + 3))
            k('v_cvt_pk_bf16_f32 v%d, v%d, v%d' % (P + 2, acc(j, 1), acc(j, 1) + 1))
            k('v_cvt_pk_bf16_f32 v%d, v%d, v%d' % (P + 3, acc(j, 1) + 2, acc(j, 1) + 3))
            P2 = acc(jp, 4) + 2 * dj
            k('v_cvt_pk_bf16_f32 v%d, v%d, v%d' % (P2, acc(j, 2), acc(j, 2) + 1))
            k('v_cvt_pk_bf16_f32 v%d, v%d, v%d' % (P2 + 1, acc(j, 2) + 2, acc(j, 2) + 3))
            k('v_permlane16_swap_b32 v%d, v%d' % (P, P + 2))
            k('v_permlane16_swap_b32 v%d, v%d' % (P + 1, P + 3))
            store(P, vA1, j)
        swiglu(A6, B6, vC + 4)
        P2 = acc(jp, 4)
        k('v_permlane16_swap_b32 v%d, v%d' % (P2, P2 + 2))
        k('v_permlane16_swap_b32 v%d, v%d' % (P2 + 1, P2 + 3))
        store(P2, vA2, jp)
        jq = jp & ~3
        P3 = acc(jq, 5) + 2 * ((jp >> 1) & 1)
        k('v_cvt_pk_bf16_f32 v%d, v%d, v%d' % (P3, A6, A6 + 1))
        k('v_cvt_pk_bf16_f32 v%d, v%d, v%d' % (P3 + 1, A6 + 2, A6 + 3))
        if jp & 2:
            P3 = acc(jq, 5)
            k('s_nop 1')
            k('v_permlane32_swap_b32 v%d, v%d' % (P3, P3 + 2))
            k('v_permlane32_swap_b32 v%d, v%d' % (P3 + 1, P3 + 3))
            store(P3, vA3, jq)
    k('s_waitcnt vmcnt(0)')
    if diag:
        stamp_flush(k, kidx, 8, sWS, 48, 2, 0)
    k.label(done)
    k('s_endpgm')
    ao = MB + 32
    txt = k.text(ao + 2 * FSET, ao)
    return dict(name=name, text=txt, grid=256, block=NW * 64, lds=LDS, nst=8)
```

```python
from asmlib import *


def gen_kd(PD=2, diag=False, kidx=3, nomfma=False, name='kd_kernel', xmap='4x8', rot=7, early_h=True, dbg=''):
    k = K(name)
    NT = 4
    NSTEP = 28
    RED = 65536
    LDS = 163840
    MB = 128
    vDT = MB
    vDW = [MB + 1 + i for i in range(4)]
    vWR = [MB + 5 + i for i in range(4)]
    vLane = MB + 9
    vT = MB + 10
    vH = MB + 24
    vTab = MB + 40
    NV = MB + 44
    sWS, sWave, sTT, sCT, sTO, sWO, sCnt, sMW = 4, 28, 29, 30, 31, 32, 33, 34
    s4k = 35
    sT = 40
    RT, RW, RO, RH = 12, 16, 20, 24

    def acc(j, b):
        return (j * 4 + b) * 4

    def fT(s, j):
        return s * 32 + j * 4

    def fW(s, b):
        return 128 + s * 16 + b * 4

    done = k.newlabel('done')
    k('s_cmp_ge_u32 s2, 256')
    k('s_cbranch_scc1 %s' % done)
    if diag:
        stamp(k, 0)
    k('s_load_dwordx4 s[8:11], s[0:1], %d' % KARG['wd'])
    k('s_load_dwordx2 s[4:5], s[0:1], %d' % KARG['ws'])
    k('v_and_b32 v%d, 63, v0' % vLane)
    k('v_lshrrev_b32 v%d, 6, v0' % vT)
    k('s_and_b32 s%d, s2, 7' % sT)
    k('v_readfirstlane_b32 s%d, v%d' % (sWave, vT))
    k('s_lshr_b32 s%d, s2, 3' % (sT + 1))
    if xmap == '4x8':
        k('s_lshr_b32 s%d, s%d, 1' % (sT + 2, sT))
        k('s_lshl_b32 s%d, s%d, 2' % (sT + 2, sT + 2))
        k('s_lshr_b32 s%d, s%d, 3' % (sT + 3, sT + 1))
        k('s_add_u32 s%d, s%d, s%d' % (sTT, sT + 2, sT + 3))
        k('s_and_b32 s%d, s%d, 1' % (sT + 2, sT))
        k('s_lshl_b32 s%d, s%d, 3' % (sT + 2, sT + 2))
        k('s_and_b32 s%d, s%d, 7' % (sT + 3, sT + 1))
        k('s_add_u32 s%d, s%d, s%d' % (sCT, sT + 2, sT + 3))
    elif xmap == '2x16':
        k('s_lshl_b32 s%d, s%d, 1' % (sT + 2, sT))
        k('s_lshr_b32 s%d, s%d, 4' % (sT + 3, sT + 1))
        k('s_add_u32 s%d, s%d, s%d' % (sTT, sT + 2, sT + 3))
        k('s_and_b32 s%d, s%d, 15' % (sCT, sT + 1))
    elif xmap == '8x4':
        k('s_lshr_b32 s%d, s%d, 2' % (sT + 2, sT))
        k('s_lshl_b32 s%d, s%d, 3' % (sT + 2, sT + 2))
        k('s_lshr_b32 s%d, s%d, 2' % (sT + 3, sT + 1))
        k('s_add_u32 s%d, s%d, s%d' % (sTT, sT + 2, sT + 3))
        k('s_and_b32 s%d, s%d, 3' % (sT + 2, sT))
        k('s_lshl_b32 s%d, s%d, 2' % (sT + 2, sT + 2))
        k('s_and_b32 s%d, s%d, 3' % (sT + 3, sT + 1))
        k('s_add_u32 s%d, s%d, s%d' % (sCT, sT + 2, sT + 3))
    if 'samet' in dbg:
        k('s_mov_b32 s%d, s%d' % (sTT, sT))
    if 'samec' in dbg:
        k('s_mov_b32 s%d, s%d' % (sCT, sT))
    k('v_lshlrev_b32 v%d, 4, v%d' % (vDT, vLane))
    k('v_lshrrev_b32 v%d, 3, v%d' % (vT, vLane))
    k('v_and_b32 v%d, 6, v%d' % (vT + 1, vT))
    k('v_and_b32 v%d, 7, v%d' % (vT + 2, vLane))
    k('v_xor_b32 v%d, v%d, v%d' % (vT + 2, vT + 2, vT + 1))
    k('v_and_b32 v%d, 3, v%d' % (vT + 3, vT))
    k('v_lshrrev_b32 v%d, 2, v%d' % (vT + 4, vT))
    k('v_lshl_add_u32 v%d, v%d, 3, v%d' % (vT + 3, vT + 4, vT + 3))
    k('v_lshlrev_b32 v%d, 11, v%d' % (vT + 3, vT + 3))
    k('v_lshl_add_u32 v%d, v%d, 4, v%d' % (vT + 3, vT + 2, vT + 3))
    k('s_lshl_b32 s%d, s%d, 7' % (sT + 2, sCT))
    k('v_add_u32 v%d, s%d, v%d' % (vT + 3, sT + 2, vT + 3))
    for p in range(4):
        hh, qh = p >> 1, p & 1
        kk = 16 * qh + 4 * hh
        k('v_add_u32 v%d, %d, v%d' % (vDW[p], kk * 2048 + 4096 - 1024 * p, vT + 3))
    k('v_lshrrev_b32 v%d, 2, v%d' % (vT, vLane))
    k('v_and_b32 v%d, 6, v%d' % (vT + 1, vT))
    k('v_and_b32 v%d, 3, v%d' % (vT + 2, vLane))
    k('v_lshlrev_b32 v%d, 3, v%d' % (vT + 2, vT + 2))
    k('v_lshl_add_u32 v%d, v%d, 7, v%d' % (vT + 2, vT, vT + 2))
    k('s_lshl_b32 s%d, s%d, 14' % (sMW, sWave))
    k('v_add_u32 v%d, s%d, v%d' % (vT + 2, sMW, vT + 2))
    for b in range(4):
        k('v_xor_b32 v%d, %d, v%d' % (vT + 3, 2 * b, vT + 1))
        k('v_lshl_add_u32 v%d, v%d, 4, v%d' % (vWR[b], vT + 3, vT + 2))
    if rot:
        k('s_lshl_b32 s%d, s%d, 1' % (sT + 2, sTT))
        k('s_add_u32 s%d, s%d, s%d' % (sT + 2, sT + 2, sCT))
        k('s_mul_i32 s%d, s%d, %d' % (sT + 3, sT + 2, (65536 + rot - 1) // rot))
        k('s_lshr_b32 s%d, s%d, 16' % (sT + 3, sT + 3))
        k('s_mul_i32 s%d, s%d, %d' % (sT + 3, sT + 3, rot))
        k('s_sub_u32 s%d, s%d, s%d' % (sT + 2, sT + 2, sT + 3))
        k('v_mul_u32_u24 v%d, %d, v%d' % (vT, (65536 + rot - 1) // rot, vLane))
        k('v_lshrrev_b32 v%d, 16, v%d' % (vT, vT))
        k('v_mul_u32_u24 v%d, %d, v%d' % (vT, rot, vT))
        k('v_sub_u32 v%d, v%d, v%d' % (vT + 1, vLane, vT))
        k('v_add_u32 v%d, s%d, v%d' % (vT + 1, sT + 2, vT + 1))
        k('v_subrev_u32 v%d, %d, v%d' % (vT + 2, rot, vT + 1))
        k('v_min_u32 v%d, v%d, v%d' % (vT + 1, vT + 1, vT + 2))
        k('v_add_u32 v%d, v%d, v%d' % (vT, vT, vT + 1))
    else:
        k('v_mov_b32 v%d, v%d' % (vT, vLane))
    k('v_lshlrev_b32 v%d, 2, v%d' % (vT, vT))
    k('v_add_u32 v%d, s%d, v%d' % (vT, sWave, vT))
    k('v_lshlrev_b32 v%d, 13, v%d' % (vTab, vT))
    k('s_waitcnt lgkmcnt(0)')
    if diag:
        stamp(k, 1)
    k('s_mul_i32 s%d, s%d, %d' % (sT, sTT, 112 * 8192))
    k('s_add_u32 s%d, s%d, 0x%x' % (sT, sT, WS_ACT))
    k('s_add_u32 s%d, s4, s%d' % (RT, sT))
    k('s_addc_u32 s%d, s5, 0' % (RT + 1))
    k('s_mov_b32 s%d, 0x%x' % (RT + 2, 0 if 'not' in dbg else 112 * 8192))
    k('s_mov_b32 s%d, 0x20000' % (RT + 3))
    k('s_sub_u32 s%d, s8, 0x1000' % RW)
    k('s_subb_u32 s%d, s9, 0' % (RW + 1))
    k('s_mov_b32 s%d, 0x%x' % (RW + 2, 0 if 'now' in dbg else 3584 * 2048 + 4096))
    k('s_mov_b32 s%d, 0x20000' % (RW + 3))
    srd(k, RO, 10, 2048 * 2048)
    srd(k, RH, sWS, 2048 * 2048, WS_H)
    sTO2 = sT + 1
    sNX, sIdx = 36, 37
    k('v_readlane_b32 s%d, v%d, 0' % (sNX, vTab))
    k('s_mov_b32 s%d, 1' % sIdx)
    k('s_nop 3')
    k('s_lshl_b32 s%d, s%d, 3' % (sWO, sNX))
    k('s_nop 3')

    def wdma(slot, p):
        g = []
        if p == 0:
            g += ['s_add_u32 m0, s%d, %d' % (sMW, slot * 4096), 's_nop 0']
        g.append('buffer_load_dwordx4 v%d, s[%d:%d], s%d offen offset:%d lds' % (vDW[p], RW, RW + 3, sWO, 1024 * p))
        return g

    def advance():
        return ['s_mov_b32 s%d, s%d' % (sTO, sNX), 's_add_u32 s%d, s%d, 0x1000' % (sTO2, sNX),
                'v_readlane_b32 s%d, v%d, s%d' % (sNX, vTab, sIdx), 's_add_u32 s%d, s%d, 1' % (sIdx, sIdx),
                's_nop 1', 's_lshl_b32 s%d, s%d, 3' % (sWO, sNX)]

    def tload(s, j):
        g = ['buffer_load_dwordx4 %s, v%d, s[%d:%d], s%d offen offset:%d' % (ar(fT(s, j), 4), vDT, RT, RT + 3, sTO if j < 4 else sTO2, 1024 * (j % 4))]
        if j == 7:
            g += advance()
        return g

    def wread(s, slot, idx):
        b, hh = idx >> 1, idx & 1
        return ['ds_read_b64_tr_b16 %s, v%d offset:%d' % (ar(fW(s, b) + 2 * hh, 2), vWR[b], slot * 4096 + hh * 2048)]

    wp = {0: [0, 1], 1: [2, 3]}
    order = []
    for j in range(8):
        for p in wp.get(j, []):
            order.append(('W', p))
        order.append(('T', j))
    pos = {op: i for i, op in enumerate(order)}
    NOP = len(order)

    for p in range(4):
        for l in wdma(0, p):
            k(l)
    for l in advance():
        k(l)
    for i in range(PD):
        for (t, x) in order:
            for l in (wdma((i + 1) % 4, x) if t == 'W' else tload(i % NT, x)):
                k(l)
    for r in range(128):
        k('v_mov_b32 v%d, 0' % r)
    k('s_waitcnt vmcnt(%d)' % (PD * NOP))
    for idx in range(8):
        for l in wread(0, 0, idx):
            k(l)
    k('s_mov_b32 s%d, 0' % sCnt)
    if diag:
        stamp(k, 2)
    loop = k.newlabel('loop')
    k('.p2align 6')
    k.label(loop)
    for i in range(4):
        issued = 0
        for j in range(8):
            n = (NOP - 1 - pos[('T', j)]) + (PD - 1) * NOP + issued
            if j == 0:
                k('s_waitcnt vmcnt(%d) lgkmcnt(0)' % n)
            else:
                k('s_waitcnt vmcnt(%d)' % n)
            side = []
            for p in wp.get(j, []):
                side.append(wdma((i + PD + 1) % 4, p))
            side.append(tload((i + PD) % NT, j))
            issued += len(side)
            if 2 <= j <= 5:
                side.append(wread((i + 1) % 2, (i + 1) % 4, 2 * (j - 2)))
                side.append(wread((i + 1) % 2, (i + 1) % 4, 2 * (j - 2) + 1))
            for b in range(4):
                a = acc(j, b)
                if nomfma:
                    k('s_nop 0')
                else:
                    k('v_mfma_f32_16x16x32_bf16 %s, %s, %s, %s' % (vr(a, 4), ar(fW(i % 2, b), 4), ar(fT(i % NT, j), 4), vr(a, 4)))
                if b < len(side):
                    for l in side[b]:
                        k(l)
    k('s_add_u32 s%d, s%d, 1' % (sCnt, sCnt))
    k('s_cmp_lt_u32 s%d, %d' % (sCnt, NSTEP // 4))
    k('s_cbranch_scc1 %s' % loop)
    if diag:
        stamp(k, 3)
    vN, vQ, vCh, vAH, vAO, vRW = vT, vT + 1, vT + 2, vT + 3, vT + 4, vT + 5
    vX = vT + 6
    k('v_and_b32 v%d, 15, v%d' % (vN, vLane))
    k('v_lshrrev_b32 v%d, 4, v%d' % (vQ, vLane))
    k('v_and_b32 v%d, 1, v%d' % (vX, vQ))
    k('v_lshrrev_b32 v%d, 1, v%d' % (vX + 1, vQ))
    k('v_lshl_add_u32 v%d, v%d, 1, v%d' % (vCh, vX, vX + 1))
    k('s_lshl_b32 s%d, s%d, 3' % (sT + 2, sTT))
    k('s_lshl_b32 s%d, s%d, 1' % (sT + 3, sWave))
    k('s_add_u32 s%d, s%d, s%d' % (sT + 2, sT + 2, sT + 3))
    k('s_lshr_b32 s%d, s%d, 4' % (sT + 3, sT + 2))
    k('s_lshl_b32 s%d, s%d, 4' % (sT + 3, sT + 3))
    k('s_add_u32 s%d, s%d, s%d' % (sT + 3, sT + 3, sCT))
    k('s_lshl_b32 s%d, s%d, 15' % (sT + 3, sT + 3))
    k('s_and_b32 s%d, s%d, 15' % (sT + 4, sT + 2))
    k('s_lshl_b32 s%d, s%d, 10' % (sT + 4, sT + 4))
    k('s_add_u32 s%d, s%d, s%d' % (sT + 3, sT + 3, sT + 4))
    k('s_add_u32 s%d, s%d, 0x4000' % (sT + 4, sT + 3))
    k('v_lshl_add_u32 v%d, v%d, 4, v%d' % (vAH, vCh, vN))
    k('v_lshlrev_b32 v%d, 4, v%d' % (vAH, vAH))
    for dj in range(2):
        for be in range(2):
            k('buffer_load_dwordx4 %s, v%d, s[%d:%d], s%d offen offset:%d' % (vr(vH + 8 * dj + 4 * be, 4), vAH, RH, RH + 3, sT + 3 + be, 1024 * dj))
    k('s_lshl_b32 s%d, s%d, 20' % (sT + 5, sWave))
    k('s_lshl_b32 s%d, s%d, 11' % (sT + 6, sTT))
    k('s_add_u32 s%d, s%d, s%d' % (sT + 5, sT + 5, sT + 6))
    k('s_lshl_b32 s%d, s%d, 7' % (sT + 6, sCT))
    k('s_add_u32 s%d, s%d, s%d' % (sT + 5, sT + 5, sT + 6))
    k('s_add_u32 s%d, s%d, 0x80000' % (sT + 6, sT + 5))
    k('v_lshlrev_b32 v%d, 15, v%d' % (vAO, vN))
    k('v_lshl_add_u32 v%d, v%d, 4, v%d' % (vAO, vCh, vAO))
    k('v_lshlrev_b32 v%d, 4, v%d' % (vRW, vLane))
    k('v_add_u32 v%d, %d, v%d' % (vRW, RED, vRW))
    k('v_add_u32 v%d, 0xc000, v%d' % (vX, vRW))
    join = k.newlabel('join')
    labs = [k.newlabel('w%d' % w) for w in range(4)]
    for w in range(1, 4):
        k('s_cmp_eq_u32 s%d, %d' % (sWave, w))
        k('s_cbranch_scc1 %s' % labs[w])

    def ldsaddr(off):
        return (vRW, off) if off < 0xc000 else (vX, off - 0xc000)

    for w in range(4):
        k.label(labs[w])
        for o in range(4):
            if o == w:
                continue
            idx = (w - o - 1) & 3
            for qd in range(8):
                va, off = ldsaddr((o * 3 + idx) * 8192 + qd * 1024)
                k('ds_write_b128 v%d, %s offset:%d' % (va, vr(acc(2 * o, 0) + 4 * qd, 4), off))
        k('s_waitcnt lgkmcnt(0)')
        k('s_barrier')
        others = [o for o in range(4) if o != w]
        for idx in range(3):
            for qd in range(8):
                va, off = ldsaddr((w * 3 + idx) * 8192 + qd * 1024)
                k('ds_read_b128 %s, v%d offset:%d' % (vr(acc(2 * others[idx], 0) + 4 * qd, 4), va, off))
        own = acc(2 * w, 0)
        for idx in range(3):
            k('s_waitcnt lgkmcnt(%d)' % min(15, 8 * (2 - idx)))
            if idx == 0:
                k('s_waitcnt lgkmcnt(15)')
            src = acc(2 * others[idx], 0)
            for r in range(0, 32, 2):
                if idx == 0 and r == 28:
                    pass
                k('v_pk_add_f32 %s, %s, %s' % (vr(own + r, 2), vr(own + r, 2), vr(src + r, 2)))
        k('s_waitcnt vmcnt(0)')
        for dj in range(2):
            for be in range(2):
                A = own + (dj * 4 + 2 * be) * 4
                B = A + 4
                for i in range(4):
                    k('v_permlane16_swap_b32 v%d, v%d' % (A + i, B + i))
                H = vH + 8 * dj + 4 * be
                for i in range(4):
                    D0 = A + 2 * i
                    k('v_lshlrev_b32 v%d, 16, v%d' % (vX + 2, H + i))
                    k('v_and_b32 v%d, 0xffff0000, v%d' % (vX + 3, H + i))
                    k('v_pk_add_f32 %s, %s, %s' % (vr(D0, 2), vr(D0, 2), vr(vX + 2, 2)))
                    k('v_cvt_pk_bf16_f32 v%d, v%d, v%d' % (H + i, D0, D0 + 1))
                k('buffer_store_dwordx4 %s, v%d, s[%d:%d], s%d offen offset:%d' % (vr(H, 4), vAO, RO, RO + 3, sT + 5 + dj, 64 * be))
        if w < 3:
            k('s_branch %s' % join)
    k.label(join)
    if diag:
        k('s_waitcnt vmcnt(0)')
        stamp_flush(k, kidx, 5, sWS, 48, 2, 0)
    k.label(done)
    k('s_endpgm')
    txt = k.text(NV + 160, NV)
    return dict(name=name, text=txt, grid=256, block=256, lds=LDS, nst=5)
```

```python
import sys
from ka import gen_ka
from kb import gen_kb
from kc import gen_kc
from kd import gen_kd
from build import build
def make(diag=False, kc=None, kd=None, ka=None, kb=None):
    return build([gen_ka(diag=diag, **(ka or {})), gen_kb(diag=diag, **(kb or {})), gen_kc(diag=diag, **(kc or {})), gen_kd(diag=diag, **(kd or {}))])
if __name__ == '__main__':
    open('all_diag.s', 'w').write(make(True, kd=dict(PD=1)))
    open('all.s', 'w').write(make(False, kd=dict(PD=1)))
```

```python
WS_U = 0x0000000
WS_HC = 0x1000000
WS_H = 0x1400000
WS_SS = 0x1800000
WS_XM = 0x1840000
WS_ACT = 0x2000000
WS_PART = 0x3000000
WS_STAMP = 0xF000000
WS_BYTES = 0x10000000

KARG = dict(x=0, cs=8, ss=16, cd=24, sd=32, bx=40, wg=48, wu=56, wd=64, out=72, dbg=80, ws=88)


class K:
    def __init__(self, name):
        self.name = name
        self.lines = []
        self.nlabel = 0

    def __call__(self, s, *a):
        for ln in s.split('\n'):
            ln = ln.strip()
            if ln:
                self.lines.append('    ' + ln)

    def c(self, s):
        self.lines.append('    ; ' + s)

    def label(self, l):
        self.lines.append(l + ':')

    def newlabel(self, base):
        self.nlabel += 1
        return 'L_%s_%s_%d' % (self.name, base, self.nlabel)

    def nop(self, n):
        while n > 0:
            k = min(n, 16)
            self('s_nop %d' % (k - 1))
            n -= k

    def text(self, nvgpr, accum_offset, nsgpr=102):
        hdr = ['.text', '.globl %s' % self.name, '.p2align 8', '.type %s,@function' % self.name, '%s:' % self.name]
        kd = ['.section .rodata,"a"', '.p2align 6', '.amdhsa_kernel %s' % self.name,
              '  .amdhsa_next_free_vgpr %d' % nvgpr,
              '  .amdhsa_next_free_sgpr %d' % nsgpr,
              '  .amdhsa_accum_offset %d' % accum_offset,
              '  .amdhsa_group_segment_fixed_size 0',
              '  .amdhsa_kernarg_size 96',
              '  .amdhsa_user_sgpr_count 2',
              '  .amdhsa_user_sgpr_kernarg_segment_ptr 1',
              '  .amdhsa_system_sgpr_workgroup_id_x 1',
              '  .amdhsa_float_denorm_mode_32 3',
              '  .amdhsa_float_denorm_mode_16_64 3',
              '.end_amdhsa_kernel']
        return '\n'.join(hdr + self.lines + kd) + '\n'


def vr(b, n=1):
    return 'v%d' % b if n == 1 else 'v[%d:%d]' % (b, b + n - 1)


def ar(b, n=1):
    return 'a%d' % b if n == 1 else 'a[%d:%d]' % (b, b + n - 1)


def sr(b, n=1):
    return 's%d' % b if n == 1 else 's[%d:%d]' % (b, b + n - 1)


def interleave(main, side, start=0, end=None):
    n = len(main)
    if end is None:
        end = n
    span = end - start
    out = []
    slots = [[] for _ in range(n)]
    m = len(side)
    for k, g in enumerate(side):
        pos = start + (k * span) // m if m else 0
        slots[min(pos, n - 1)].append(g)
    for i in range(n):
        out.append(main[i])
        for g in slots[i]:
            out.extend(g)
    return out


def srd(k, d, base, nbytes, off=0):
    if off:
        k('s_add_u32 s%d, s%d, 0x%x' % (d, base, off))
        k('s_addc_u32 s%d, s%d, 0' % (d + 1, base + 1))
    else:
        k('s_mov_b32 s%d, s%d' % (d, base))
        k('s_mov_b32 s%d, s%d' % (d + 1, base + 1))
    k('s_mov_b32 s%d, 0x%x' % (d + 2, nbytes))
    k('s_mov_b32 s%d, 0x20000' % (d + 3))


SB = 64


def stamp(k, i):
    if i == 0:
        k('s_memrealtime s[%d:%d]' % (SB, SB + 1))
    k('s_memtime s[%d:%d]' % (SB + 4 + 2 * i, SB + 5 + 2 * i))


def stamp_flush(k, kidx, n, s_ws, s_tmp, s_wg, vt, s_wave=None):
    t = s_tmp
    k('s_memrealtime s[%d:%d]' % (SB + 2, SB + 3))
    stamp(k, n - 1)
    srd(k, t, s_ws, 0x100000, WS_STAMP)
    k('s_lshl_b32 s%d, s%d, 7' % (t + 4, s_wg))
    k('s_add_u32 s%d, s%d, %d' % (t + 4, t + 4, kidx * 512 * 128))
    k('s_waitcnt lgkmcnt(0)')
    k('v_mov_b32 v%d, s%d' % (vt + 4, t + 4))
    k('s_getreg_b32 s%d, hwreg(HW_REG_XCC_ID)' % (t + 4))
    k('v_mov_b32 v%d, s%d' % (vt, t + 4))
    k('s_getreg_b32 s%d, hwreg(HW_REG_HW_ID)' % (t + 4))
    k('v_mov_b32 v%d, s%d' % (vt + 1, t + 4))
    k('buffer_store_dwordx2 v[%d:%d], v%d, s[%d:%d], 0 offen offset:120' % (vt, vt + 1, vt + 4, t, t + 3))
    k('s_nop 1')
    for q in range((4 + 2 * n + 3) // 4):
        for i in range(4):
            k('v_mov_b32 v%d, s%d' % (vt + i, SB + 4 * q + i))
        k('buffer_store_dwordx4 v[%d:%d], v%d, s[%d:%d], 0 offen offset:%d' % (vt, vt + 3, vt + 4, t, t + 3, 16 * q))
        k('s_nop 1')


def prefetch_w(k, jobs, s_wave, v_lane, sp, R, st, vt, vdst):
    k('v_min_u32 v%d, 55, v%d' % (vt, v_lane))
    for job in jobs:
        if job in ('wg', 'wu'):
            k('v_mul_u32_u24 v%d, 9363, v%d' % (vt + 1, vt))
            k('v_lshrrev_b32 v%d, 16, v%d' % (vt + 1, vt + 1))
            k('v_mul_u32_u24 v%d, 7, v%d' % (vt + 2, vt + 1))
            k('v_sub_u32 v%d, v%d, v%d' % (vt + 2, vt, vt + 2))
            k('v_mul_u32_u24 v%d, 7168, v%d' % (vt + 1, vt + 1))
            k('v_lshl_add_u32 v%d, v%d, 7, v%d' % (vt + 1, vt + 2, vt + 1))
            k('s_lshr_b32 s%d, s2, 3' % st)
            k('s_lshl_b32 s%d, s%d, 2' % (st, st))
            k('s_add_u32 s%d, s%d, s%d' % (st, st, s_wave))
            k('s_mul_i32 s%d, s%d, %d' % (st, st, 8 * 7168))
            k('s_and_b32 s%d, s2, 7' % (st + 1))
            k('s_mul_i32 s%d, s%d, 896' % (st + 1, st + 1))
            k('s_add_u32 s%d, s%d, s%d' % (st, st, st + 1))
        elif job in ('gu8', 'gu16', 'gu8b'):
            k('v_mul_u32_u24 v%d, 9363, v%d' % (vt + 1, vt))
            k('v_lshrrev_b32 v%d, 16, v%d' % (vt + 1, vt + 1))
            k('v_mul_u32_u24 v%d, 7, v%d' % (vt + 2, vt + 1))
            k('v_sub_u32 v%d, v%d, v%d' % (vt + 2, vt, vt + 2))
            k('v_mul_u32_u24 v%d, 7168, v%d' % (vt + 1, vt + 1))
            k('v_lshl_add_u32 v%d, v%d, 7, v%d' % (vt + 1, vt + 2, vt + 1))
            k('s_lshr_b32 s%d, s2, 3' % st)
            if job == 'gu16':
                k('s_lshr_b32 s%d, s%d, 1' % (st + 1, s_wave))
                k('s_lshl_b32 s%d, s%d, 5' % (st + 1, st + 1))
                k('s_add_u32 s%d, s%d, s%d' % (st, st, st + 1))
            if job == 'gu8b':
                k('s_add_u32 s%d, s%d, 32' % (st, st))
            k('s_mul_i32 s%d, s%d, %d' % (st, st, 8 * 7168))
            k('s_and_b32 s%d, s2, 7' % (st + 1))
            k('s_mul_i32 s%d, s%d, 896' % (st + 1, st + 1))
            k('s_add_u32 s%d, s%d, s%d' % (st, st, st + 1))
            k('s_bitcmp0_b32 s%d, 0' % s_wave)
            k('s_cselect_b32 s%d, s%d, s%d' % (R, sp['wg'], sp['wu']))
            k('s_cselect_b32 s%d, s%d, s%d' % (R + 1, sp['wg'] + 1, sp['wu'] + 1))
            k('s_mov_b32 s%d, 0x%x' % (R + 2, 1024 * 7168))
            k('s_mov_b32 s%d, 0x20000' % (R + 3))
            k('buffer_load_dword v%d, v%d, s[%d:%d], s%d offen' % (vdst, vt + 1, R, R + 3, st))
            continue
        else:
            k('v_lshlrev_b32 v%d, 7, v%d' % (vt + 1, vt))
            k('s_lshl_b32 s%d, s2, 2' % st)
            k('s_add_u32 s%d, s%d, s%d' % (st, st, s_wave))
            k('s_mul_i32 s%d, s%d, 7168' % (st, st))
        srd(k, R, sp[job], 1024 * 7168)
        k('buffer_load_dword v%d, v%d, s[%d:%d], s%d offen' % (vdst, vt + 1, R, R + 3, st))


def order_table(k, N, S0, L, ndes, sC, sT, vLane, vT, vTab):
    pat = ((1 << ndes) - 1) * 0x01010101
    k('s_mov_b32 s%d, 0x%x' % (sT, pat))
    k('s_mov_b32 s%d, 0x%x' % (sT + 1, pat))
    k('s_lshl_b64 s[%d:%d], s[%d:%d], s%d' % (sT, sT + 1, sT, sT + 1, sC))
    k('s_and_b32 s%d, s%d, 0x%x' % (sT + 1, sT + 1, (((1 << N) - 1) & ~((1 << S0) - 1)) & 0xffffffff))
    k('v_mov_b32 v%d, s%d' % (vT + 1, sT + 1))
    k('v_lshrrev_b32 v%d, v%d, v%d' % (vT, vLane, vT + 1))
    k('v_and_b32 v%d, 1, v%d' % (vT, vT))
    k('v_cmp_eq_u32 vcc, 1, v%d' % vT)
    k('v_subrev_u32 v%d, %d, v%d' % (vT + 2, L, vLane))
    k('v_max_i32 v%d, 0, v%d' % (vT + 2, vT + 2))
    k('v_add_u32 v%d, %d, v%d' % (vT + 3, L + 1, vLane))
    k('v_min_u32 v%d, %d, v%d' % (vT + 3, N, vT + 3))
    k('v_cndmask_b32 v%d, v%d, v%d, vcc' % (vT + 2, vLane, vT + 2))
    k('v_cndmask_b32 v%d, v%d, v%d, vcc' % (vT + 3, vT + 3, vLane))
    k('v_bfm_b32 v%d, v%d, 0' % (vT + 4, vT + 2))
    k('v_and_b32 v%d, v%d, v%d' % (vT + 4, vT + 4, vT + 1))
    k('v_bcnt_u32_b32 v%d, v%d, 0' % (vT + 4, vT + 4))
    k('v_sub_u32 v%d, v%d, v%d' % (vT + 2, vT + 2, vT + 4))
    k('v_bcnt_u32_b32 v%d, v%d, v%d' % (vT + 2, vT + 1, vT + 2))
    k('v_lshrrev_b32 v%d, 1, v%d' % (vT + 4, vT + 3))
    k('v_sub_u32 v%d, v%d, v%d' % (vT + 3, vT + 3, vT + 4))
    k('v_lshrrev_b32 v%d, v%d, v%d' % (vT + 4, vT + 4, vT + 1))
    k('v_lshrrev_b32 v%d, v%d, v%d' % (vT + 4, vT + 3, vT + 4))
    k('v_bcnt_u32_b32 v%d, v%d, 0' % (vT + 4, vT + 4))
    k('v_cmp_gt_u32 vcc, %d, v%d' % (N, vLane))
    k('v_sub_u32 v%d, v%d, v%d' % (vT + 2, vT + 2, vT + 4))
    k('s_nop 0')
    k('v_cndmask_b32 v%d, v%d, v%d, vcc' % (vT + 2, vLane, vT + 2))
    k('v_lshlrev_b32 v%d, 2, v%d' % (vT + 2, vT + 2))
    k('ds_permute_b32 v%d, v%d, v%d' % (vTab, vT + 2, vLane))
```

```python
from asmlib import *
from kc import f32hex

WS_X2 = WS_U + 0x400000


def gen_ka(diag=False, kidx=0, name='ka_kernel', pf=(), pfe=()):
    k = K(name)
    ROW = 544
    LDS = 32 * ROW
    sWS, sWave, sG, sHF = 4, 28, 29, 30
    sT = 32
    sM = 40
    sR = 44
    sNq = 48
    RX, RU, RX2, RM = 12, 16, 20, 24
    vX = 0
    vE = 32
    vF2c, vF2s, vC3, vS3, vS3n, vGr, vGi = 96, 100, 104, 108, 112, 116, 120
    vTc, vTs = 124, 132
    vLane, vN, vQ = 140, 141, 142
    vT = 144
    NV = 176

    done = k.newlabel('done')
    k('s_cmp_ge_u32 s2, 256')
    k('s_cbranch_scc1 %s' % done)
    if diag:
        stamp(k, 0)
    k('s_load_dwordx2 s[8:9], s[0:1], %d' % KARG['x'])
    k('s_load_dwordx2 s[4:5], s[0:1], %d' % KARG['ws'])
    if pf or pfe:
        k('s_load_dwordx4 s[92:95], s[0:1], %d' % KARG['wg'])
        k('s_load_dwordx2 s[96:97], s[0:1], %d' % KARG['wd'])
    k('v_and_b32 v%d, 63, v0' % vLane)
    k('v_lshrrev_b32 v%d, 6, v0' % vT)
    k('v_and_b32 v%d, 15, v0' % vN)
    k('v_readfirstlane_b32 s%d, v%d' % (sWave, vT))
    k('v_lshrrev_b32 v%d, 4, v%d' % (vQ, vLane))
    k('s_and_b32 s%d, s2, 7' % sT)
    k('s_lshr_b32 s%d, s2, 4' % (sT + 1))
    k('s_lshl_b32 s%d, s%d, 3' % (sT + 1, sT + 1))
    k('s_add_u32 s%d, s%d, s%d' % (sG, sT, sT + 1))
    k('s_bfe_u32 s%d, s2, 0x10003' % sHF)
    k('v_lshlrev_b32 v%d, 2, v%d' % (vT, vN))
    k('v_lshl_add_u32 v%d, v%d, 9, v%d' % (vT, vQ, vT))
    k('s_lshl_b32 s%d, s%d, 9' % (sT, sWave))
    k('s_add_u32 s%d, s%d, s%d' % (sT, sT, sG))
    k('s_lshl_b32 s%d, s%d, 11' % (sT, sT))
    for jj in range(1, 4):
        k('s_add_u32 s%d, s%d, 0x%x' % (sT + jj, sT, jj * 128 * 2048))
    k('s_waitcnt lgkmcnt(0)')
    srd(k, RX, 8, 2048 * 2048)
    for jj in range(4):
        for i in range(8):
            k('buffer_load_dword v%d, v%d, s[%d:%d], s%d offen offset:%d' % (vX + 8 * jj + i, vT, RX, RX + 3, sT + jj, 64 * i))
    if pf:
        prefetch_w(k, pf, sWave, vLane, dict(wg=92, wu=94, wd=96), 60, sT + 4, vT + 2, vT + 31)
    if diag:
        stamp(k, 1)
    srd(k, RU, sWS, 0x400000, WS_U)
    srd(k, RX2, sWS, 16 * 10 * 512, WS_X2)
    srd(k, RM, sWS, 8192, WS_XM)

    A0, ST, C0, C1, S0, S1 = vT + 2, vT + 3, vT + 4, vT + 5, vT + 6, vT + 7
    fN, fQ, fEl = vT + 8, vT + 9, vT + 10
    k('v_cvt_f32_u32 v%d, v%d' % (fN, vN))
    k('v_cvt_f32_u32 v%d, v%d' % (fQ, vQ))
    k('s_lshl_b32 s%d, s%d, 4' % (sT + 4, sHF))
    k('v_add_u32 v%d, s%d, v%d' % (fEl, sT + 4, vN))
    k('v_cvt_f32_u32 v%d, v%d' % (fEl, fEl))
    k('v_mul_f32 v%d, %s, v%d' % (ST, f32hex(1 / 32.), fEl))
    k('v_mul_f32 v%d, v%d, v%d' % (A0, ST, fQ))
    k('v_mul_f32 v%d, %s, v%d' % (A0, f32hex(8.), A0))
    for p in range(4):
        k('v_cos_f32 v%d, v%d' % (C0, A0))
        k('v_sin_f32 v%d, -v%d' % (S0, A0))
        k('v_add_f32 v%d, v%d, v%d' % (A0, A0, ST))
        k('v_cos_f32 v%d, v%d' % (C1, A0))
        k('v_sin_f32 v%d, -v%d' % (S1, A0))
        k('v_add_f32 v%d, v%d, v%d' % (A0, A0, ST))
        k('v_cvt_pk_f16_f32 v%d, v%d, v%d' % (vF2c + p, C0, C1))
        k('v_cvt_pk_f16_f32 v%d, v%d, v%d' % (vF2s + p, S0, S1))
    k('v_mul_f32 v%d, %s, v%d' % (ST, f32hex(1 / 1024.), fEl))
    k('v_mul_f32 v%d, v%d, v%d' % (A0, ST, fQ))
    k('v_mul_f32 v%d, %s, v%d' % (A0, f32hex(8.), A0))
    for d in range(8):
        b, ip = d & 1, d >> 1
        k('v_cos_f32 v%d, v%d' % (vTc + 4 * b + ip, A0))
        k('v_sin_f32 v%d, v%d' % (vTs + 4 * b + ip, A0))
        if d < 7:
            k('v_add_f32 v%d, v%d, v%d' % (A0, A0, ST))
    k('v_mul_f32 v%d, %s, v%d' % (ST, f32hex(1 / 32.), fN))
    k('v_mul_f32 v%d, v%d, v%d' % (vT + 11, ST, fQ))
    k('v_mul_f32 v%d, %s, v%d' % (vT + 11, f32hex(8.), vT + 11))
    k('v_add_f32 v%d, v%d, v%d' % (vT + 12, ST, ST))
    for p in range(4):
        b = p >> 1
        if p == 0:
            k('v_mov_b32 v%d, v%d' % (A0, vT + 11))
        elif p == 2:
            k('v_add_f32 v%d, v%d, v%d' % (A0, vT + 11, ST))
        k('v_cos_f32 v%d, v%d' % (C0, A0))
        k('v_sin_f32 v%d, v%d' % (S0, A0))
        k('v_add_f32 v%d, v%d, v%d' % (A0, A0, vT + 12))
        k('v_cos_f32 v%d, v%d' % (C1, A0))
        k('v_sin_f32 v%d, v%d' % (S1, A0))
        k('v_add_f32 v%d, v%d, v%d' % (A0, A0, vT + 12))
        k('v_cvt_pk_f16_f32 v%d, v%d, v%d' % (vC3 + p, C0, C1))
        k('v_cvt_pk_f16_f32 v%d, v%d, v%d' % (vS3 + p, S0, S1))
        k('v_cvt_pk_f16_f32 v%d, -v%d, -v%d' % (vS3n + p, S0, S1))
    k('v_mul_f32 v%d, %s, v%d' % (ST, f32hex(1 / 16.), fN))
    k('v_mul_f32 v%d, v%d, v%d' % (vT + 11, ST, fQ))
    k('v_add_f32 v%d, v%d, v%d' % (vT + 11, vT + 11, vT + 11))
    for p in range(4):
        mult = 8 * (p >> 1) + (p & 1)
        k('v_mov_b32 v%d, %s' % (vT + 12, f32hex(float(mult))))
        k('v_fma_f32 v%d, v%d, v%d, v%d' % (A0, ST, vT + 12, vT + 11))
        k('v_cos_f32 v%d, v%d' % (C0, A0))
        k('v_sin_f32 v%d, v%d' % (S0, A0))
        k('s_nop 0')
        k('v_cvt_pk_f16_f32 v%d, v%d, v%d' % (vGr + p, C0, S0))
        k('v_cvt_pk_f16_f32 v%d, v%d, -v%d' % (vGi + p, S0, C0))
    if diag:
        stamp(k, 2)
    P = vT + 2
    for jj in range(4):
        k('s_waitcnt vmcnt(%d)' % (8 * (3 - jj) + len(pf)))
        for i in range(8):
            e = vE + 16 * jj + 2 * i
            k('v_lshlrev_b32 v%d, 16, v%d' % (e, vX + 8 * jj + i))
            k('v_and_b32 v%d, 0xffff0000, v%d' % (e + 1, vX + 8 * jj + i))
        e = vE + 16 * jj
        p = P + 2 * jj
        k('v_pk_add_f32 %s, %s, %s' % (vr(p, 2), vr(e, 2), vr(e + 2, 2)))
        for i in range(2, 8):
            k('v_pk_add_f32 %s, %s, %s' % (vr(p, 2), vr(p, 2), vr(e + 2 * i, 2)))
    if diag:
        stamp(k, 3)

    def reduce4(chains):
        k('s_nop 1')
        for c in chains:
            k('v_permlane32_swap_b32 v%d, v%d' % (c[0], c[1]))
            k('v_permlane32_swap_b32 v%d, v%d' % (c[2], c[3]))
        for c in chains:
            k('v_add_f32 v%d, v%d, v%d' % (c[0], c[0], c[1]))
            k('v_add_f32 v%d, v%d, v%d' % (c[2], c[2], c[3]))
        k('s_nop 1')
        for c in chains:
            k('v_permlane16_swap_b32 v%d, v%d' % (c[0], c[2]))
        for c in chains:
            k('v_add_f32 v%d, v%d, v%d' % (c[0], c[0], c[2]))
        for mode in ('quad_perm:[1,0,3,2]', 'quad_perm:[2,3,0,1]', 'row_half_mirror', 'row_mirror'):
            k('s_nop 1')
            for c in chains:
                k('v_add_f32_dpp v%d, v%d, v%d %s row_mask:0xf bank_mask:0xf' % (c[0], c[0], c[0], mode))

    reduce4([tuple(P + 2 * jj for jj in range(4)), tuple(P + 2 * jj + 1 for jj in range(4))])
    vMean, vAlt = vT + 10, vT + 11
    k('v_add_f32 v%d, v%d, v%d' % (vMean, P, P + 1))
    k('v_sub_f32 v%d, v%d, v%d' % (vAlt, P, P + 1))
    k('v_mul_f32 v%d, %s, v%d' % (vMean, f32hex(1 / 1024.), vMean))
    LROW = [0, 32, 16, 48]
    k('s_nop 0')
    for jj in range(4):
        k('v_readlane_b32 s%d, v%d, %d' % (sM + jj, vMean, LROW[jj]))
    k('s_nop 1')
    for jj in range(4):
        e = vE + 16 * jj
        k('v_mov_b32 v%d, s%d' % (vT + 12, sM + jj))
        for i in range(8):
            k('v_pk_add_f32 %s, %s, %s op_sel_hi:[1,0] neg_lo:[0,1] neg_hi:[0,1]' % (vr(e + 2 * i, 2), vr(e + 2 * i, 2), vr(vT + 12, 2)))
        p = P + 2 * jj
        k('v_pk_mul_f32 %s, %s, %s' % (vr(p, 2), vr(e, 2), vr(e, 2)))
        for i in range(1, 8):
            k('v_pk_fma_f32 %s, %s, %s, %s' % (vr(p, 2), vr(e + 2 * i, 2), vr(e + 2 * i, 2), vr(p, 2)))
        k('v_add_f32 v%d, v%d, v%d' % (p, p, p + 1))
    reduce4([tuple(P + 2 * jj for jj in range(4))])
    V = P
    k('v_mul_f32 v%d, %s, v%d' % (V, f32hex(1 / 1024.), V))
    k('v_cvt_pk_bf16_f32 v%d, v%d, v%d' % (V, V, V))
    k('v_lshlrev_b32 v%d, 16, v%d' % (V, V))
    k('v_add_f32 v%d, %s, v%d' % (V, f32hex(1e-5), V))
    k('v_cvt_pk_bf16_f32 v%d, v%d, v%d' % (V, V, V))
    k('v_lshlrev_b32 v%d, 16, v%d' % (V, V))
    k('v_sqrt_f32 v%d, v%d' % (V, V))
    k('s_nop 0')
    k('v_cvt_pk_bf16_f32 v%d, v%d, v%d' % (V, V, V))
    k('v_lshlrev_b32 v%d, 16, v%d' % (V, V))
    k('v_rcp_f32 v%d, v%d' % (V, V))
    k('s_nop 0')
    k('v_mul_f32 v%d, v%d, v%d' % (vAlt, vAlt, V))
    k('v_and_b32 v%d, 1, v%d' % (vT + 12, vQ))
    k('v_lshrrev_b32 v%d, 1, v%d' % (vT + 13, vQ))
    k('v_lshl_add_u32 v%d, v%d, 1, v%d' % (vT + 12, vT + 12, vT + 13))
    k('v_lshlrev_b32 v%d, 9, v%d' % (vT + 12, vT + 12))
    k('s_lshr_b32 s%d, s%d, 9' % (sT + 4, sT))
    k('buffer_store_dword v%d, v%d, s[%d:%d], s%d offen' % (vMean, vT + 12, RM, RM + 3, sT + 4))
    for jj in range(4):
        k('v_readlane_b32 s%d, v%d, %d' % (sR + jj, V, LROW[jj]))
        k('v_readlane_b32 s%d, v%d, %d' % (sNq + jj, vAlt, LROW[jj]))
    if diag:
        stamp(k, 4)
    vLW, vLX = vT + 14, vT + 15
    k('v_lshlrev_b32 v%d, 5, v%d' % (vLW, vN))
    k('v_lshl_add_u32 v%d, v%d, 3, v%d' % (vLW, vQ, vLW))
    k('s_mul_i32 s%d, s%d, %d' % (sT + 4, sWave, 8 * ROW))
    k('v_add_u32 v%d, s%d, v%d' % (vLW, sT + 4, vLW))
    k('v_mul_u32_u24 v%d, %d, v%d' % (vLX, ROW, vLane))
    k('v_add_u32 v%d, s%d, v%d' % (vLX, sT + 4, vLX))
    k('v_cmp_eq_u32 vcc, 0, v%d' % vLane)
    for jj in range(4):
        e = vE + 16 * jj
        k('v_mov_b32 v%d, s%d' % (vT + 12, sR + jj))
        for i in range(8):
            k('v_pk_mul_f32 %s, %s, %s op_sel_hi:[1,0]' % (vr(e + 2 * i, 2), vr(e + 2 * i, 2), vr(vT + 12, 2)))
        k('v_cvt_pk_f16_f32 v%d, s%d, v%d' % (vT + 16 + jj, sNq + jj, e))
        a = vX + 8 * jj
        for b in range(2):
            for p in range(4):
                k('v_cvt_pk_f16_f32 v%d, v%d, v%d' % (a + 4 * b + p, e + 4 * p + b, e + 4 * p + 2 + b))
        k('v_cndmask_b32 v%d, 0, v%d, vcc' % (vT + 16 + jj, vT + 16 + jj))
    k('s_mov_b64 exec, 3')
    for jj in range(4):
        k('ds_write_b32 v%d, v%d offset:%d' % (vLX, vT + 16 + jj, 2 * jj * ROW + 512))
    k('s_mov_b64 exec, -1')
    for jj in range(4):
        e = vE + 16 * jj
        a = vX + 8 * jj
        for b in range(2):
            k('v_mfma_f32_16x16x32_f16 %s, %s, %s, 0' % (vr(e + 4 * b, 4), vr(a + 4 * b, 4), vr(vF2c, 4)))
            k('v_mfma_f32_16x16x32_f16 %s, %s, %s, 0' % (vr(e + 8 + 4 * b, 4), vr(a + 4 * b, 4), vr(vF2s, 4)))
    W = vT + 16
    for jj in range(4):
        e = vE + 16 * jj
        a = vX + 8 * jj
        if jj == 3:
            k('s_nop 3')
        for h in range(4):
            re, im, c, s, w = e + 2 * h, e + 8 + 2 * h, vTc + 2 * h, vTs + 2 * h, W + 2 * h
            k('v_pk_mul_f32 %s, %s, %s' % (vr(w, 2), vr(re, 2), vr(c, 2)))
            k('v_pk_fma_f32 %s, %s, %s, %s' % (vr(w, 2), vr(im, 2), vr(s, 2), vr(w, 2)))
            k('v_pk_mul_f32 %s, %s, %s' % (vr(im, 2), vr(im, 2), vr(c, 2)))
            k('v_pk_fma_f32 %s, %s, %s, %s neg_lo:[1,0,0] neg_hi:[1,0,0]' % (vr(im, 2), vr(re, 2), vr(s, 2), vr(im, 2)))
        for h in range(4):
            k('v_cvt_pk_f16_f32 v%d, v%d, v%d' % (a + h, W + 2 * h, W + 2 * h + 1))
            k('v_cvt_pk_f16_f32 v%d, v%d, v%d' % (a + 4 + h, e + 8 + 2 * h, e + 9 + 2 * h))
        k('s_nop 1')
        k('v_mfma_f32_16x16x32_f16 %s, %s, %s, 0' % (vr(e, 4), vr(a, 4), vr(vC3, 4)))
        k('v_mfma_f32_16x16x32_f16 %s, %s, %s, 0' % (vr(e + 4, 4), vr(a + 4, 4), vr(vC3, 4)))
        k('v_mfma_f32_16x16x32_f16 %s, %s, %s, %s' % (vr(e, 4), vr(a + 4, 4), vr(vS3, 4), vr(e, 4)))
        k('v_mfma_f32_16x16x32_f16 %s, %s, %s, %s' % (vr(e + 4, 4), vr(a, 4), vr(vS3n, 4), vr(e + 4, 4)))
    for jj in range(4):
        e = vE + 16 * jj
        if jj == 3:
            k('s_nop 3')
        for part in range(2):
            k('v_cvt_pk_f16_f32 v%d, v%d, v%d' % (e + 8 + 2 * part, e + 4 * part, e + 4 * part + 1))
            k('v_cvt_pk_f16_f32 v%d, v%d, v%d' % (e + 9 + 2 * part, e + 4 * part + 2, e + 4 * part + 3))
            k('ds_write_b64 v%d, %s offset:%d' % (vLW, vr(e + 8 + 2 * part, 2), (2 * jj + part) * ROW))
    if diag:
        stamp(k, 5)
    vRA = vT + 2
    k('v_lshrrev_b32 v%d, 2, v%d' % (vRA, vLane))
    k('v_mul_u32_u24 v%d, %d, v%d' % (vRA, ROW, vRA))
    k('v_and_b32 v%d, 3, v%d' % (vT + 3, vLane))
    k('v_lshl_add_u32 v%d, v%d, 3, v%d' % (vRA, vT + 3, vRA))
    k('s_lshl_b32 s%d, s%d, 7' % (sT + 4, sWave))
    k('v_add_u32 v%d, s%d, v%d' % (vT + 4, sT + 4, vRA))
    vUA, vXA = vT + 5, vT + 6
    k('v_and_b32 v%d, 1, v%d' % (vT + 7, vQ))
    k('v_lshrrev_b32 v%d, 1, v%d' % (vT + 8, vQ))
    k('v_lshl_add_u32 v%d, v%d, 1, v%d' % (vT + 7, vT + 7, vT + 8))
    k('v_lshlrev_b32 v%d, 18, v%d' % (vUA, vN))
    k('v_lshl_add_u32 v%d, v%d, 4, v%d' % (vUA, vT + 7, vUA))
    k('s_lshl_b32 s%d, s%d, 16' % (sT + 4, sWave))
    k('s_lshl_b32 s%d, s%d, 7' % (sT + 5, sG))
    k('s_add_u32 s%d, s%d, s%d' % (sT + 4, sT + 4, sT + 5))
    k('s_lshl_b32 s%d, s%d, 6' % (sT + 5, sHF))
    k('s_add_u32 s%d, s%d, s%d' % (sT + 4, sT + 4, sT + 5))
    k('s_add_u32 s%d, s%d, 0x4000' % (sT + 5, sT + 4))
    k('s_add_u32 s%d, s%d, 0x8000' % (sT + 6, sT + 4))
    k('s_add_u32 s%d, s%d, 0xc000' % (sT + 7, sT + 4))
    k('v_mul_u32_u24 v%d, 5120, v%d' % (vXA, vN))
    sX = 52
    k('s_lshl_b32 s%d, s%d, 10' % (sX, sWave))
    k('s_lshl_b32 s%d, s%d, 1' % (sX + 1, sG))
    k('s_add_u32 s%d, s%d, s%d' % (sX, sX, sX + 1))
    k('s_waitcnt lgkmcnt(0)')
    k('s_barrier')
    FA = vX
    for blk in range(4):
        for hh in range(2):
            k('ds_read_b64_tr_b16 %s, v%d offset:%d' % (vr(FA + 4 * blk + 2 * hh, 2), vT + 4, 32 * blk + 16 * hh * ROW))
    for hh in range(2):
        k('ds_read_b64_tr_b16 %s, v%d offset:%d' % (vr(FA + 16 + 2 * hh, 2), vRA, 512 + 16 * hh * ROW))
    Dd = vE
    for blk in range(5):
        k('s_waitcnt lgkmcnt(%d)' % (2 * (4 - blk)))
        k('v_mfma_f32_16x16x32_f16 %s, %s, %s, 0' % (vr(Dd + 8 * blk, 4), vr(FA + 4 * blk, 4), vr(vGr, 4)))
        k('v_mfma_f32_16x16x32_f16 %s, %s, %s, 0' % (vr(Dd + 8 * blk + 4, 4), vr(FA + 4 * blk, 4), vr(vGi, 4)))
    k('s_nop 1')
    O = vE + 40
    for pair in range(2):
        if pair == 1:
            pass
        for part in range(2):
            o = O + (pair * 2 + part) * 4
            for u in range(2):
                d = Dd + 8 * (2 * pair + u) + 4 * part
                k('v_cvt_pk_f16_f32 v%d, v%d, v%d' % (o + 2 * u, d, d + 1))
                k('v_cvt_pk_f16_f32 v%d, v%d, v%d' % (o + 2 * u + 1, d + 2, d + 3))
    for part in range(2):
        k('v_cvt_pk_f16_f32 v%d, v%d, v%d' % (O + 16 + part, Dd + 32 + 4 * part, Dd + 33 + 4 * part))
    for pair in range(2):
        for part in range(2):
            o = O + (pair * 2 + part) * 4
            k('v_permlane16_swap_b32 v%d, v%d' % (o, o + 2))
            k('v_permlane16_swap_b32 v%d, v%d' % (o + 1, o + 3))
            k('buffer_store_dwordx4 %s, v%d, s[%d:%d], s%d offen' % (vr(o, 4), vUA, RU, RU + 3, sT + 4 + 2 * pair + part))
    fin = k.newlabel('fin')
    k('s_cmp_lg_u32 s%d, 0' % sHF)
    k('s_cbranch_scc1 %s' % fin)
    k('s_mov_b64 exec, 0xffff')
    for pair in range(2):
        for part in range(2):
            o = O + (pair * 2 + part) * 4
            k('buffer_store_short v%d, v%d, s[%d:%d], s%d offen offset:%d' % (o, vXA, RX2, RX2 + 3, sX, 512 * pair + 256 * part))
    k('s_cmp_lg_u32 s%d, 0' % sWave)
    k('s_cbranch_scc1 %s' % fin)
    k('s_add_u32 s%d, s%d, 0x1000' % (sX + 1, sX))
    for part in range(2):
        k('buffer_store_short v%d, v%d, s[%d:%d], s%d offen offset:%d' % (O + 16 + part, vXA, RX2, RX2 + 3, sX + 1, 256 * part))
        k('buffer_store_short_d16_hi v%d, v%d, s[%d:%d], s%d offen offset:%d' % (O + 16 + part, vXA, RX2, RX2 + 3, sX + 1, 512 + 256 * part))
    k.label(fin)
    k('s_mov_b64 exec, -1')
    if diag:
        stamp_flush(k, kidx, 7, sWS, 56, 2, 0)
    if pfe:
        prefetch_w(k, pfe, sWave, vLane, dict(wg=92, wu=94, wd=96), 60, sT + 4, vT + 2, vT + 31)
    k.label(done)
    k('s_endpgm')
    return dict(name=name, text=k.text(NV, NV), grid=256, block=256, lds=LDS, nst=7)
```

```python
from asmlib import *
from kc import f32hex
from ka import WS_X2


def gen_kb(diag=False, kidx=1, name='kb_kernel', pf=(), stflag='', pfe=()):
    k = K(name)
    LDS = 32768
    sWS, sWave, sR, sTB, sEB = 4, 28, 29, 30, 31
    sT = 32
    RX, RU, RX2, RM, RHC, RH, RSS = 12, 16, 20, 24, 44, 48, 52
    vB = 0
    vE = 32
    vA = 64
    vD = 96
    vXd, vXm = 116, 124
    vMd, vMm = 132, 133
    vLane, vN, vQ, vCh, vTt, vTm = 134, 135, 136, 137, 138, 139
    vRA = [140, 141, 142, 143]
    vT = 144
    NV = 176

    done = k.newlabel('done')
    k('s_cmp_ge_u32 s2, 256')
    k('s_cbranch_scc1 %s' % done)
    if diag:
        stamp(k, 0)
    k('s_load_dwordx2 s[8:9], s[0:1], %d' % KARG['x'])
    k('s_load_dwordx2 s[4:5], s[0:1], %d' % KARG['ws'])
    if pf or pfe:
        k('s_load_dwordx4 s[92:95], s[0:1], %d' % KARG['wg'])
        k('s_load_dwordx2 s[96:97], s[0:1], %d' % KARG['wd'])
    k('v_and_b32 v%d, 63, v0' % vLane)
    k('v_lshrrev_b32 v%d, 6, v0' % vT)
    k('v_and_b32 v%d, 15, v0' % vN)
    k('v_readfirstlane_b32 s%d, v%d' % (sWave, vT))
    k('v_lshrrev_b32 v%d, 4, v%d' % (vQ, vLane))
    k('s_and_b32 s%d, s2, 15' % sR)
    k('s_bfe_u32 s%d, s2, 0x10004' % sTB)
    k('s_lshr_b32 s%d, s2, 5' % sEB)
    k('v_lshrrev_b32 v%d, 3, v%d' % (vT, vLane))
    k('v_and_b32 v%d, 6, v%d' % (vT + 1, vT))
    k('v_and_b32 v%d, 7, v%d' % (vT + 2, vLane))
    k('v_xor_b32 v%d, v%d, v%d' % (vT + 2, vT + 2, vT + 1))
    k('v_and_b32 v%d, 3, v%d' % (vT + 3, vT))
    k('v_lshrrev_b32 v%d, 2, v%d' % (vT + 4, vT))
    k('v_lshl_add_u32 v%d, v%d, 3, v%d' % (vT + 3, vT + 4, vT + 3))
    k('v_lshlrev_b32 v%d, 7, v%d' % (vT + 3, vT + 3))
    k('v_lshl_add_u32 v%d, v%d, 4, v%d' % (vT + 3, vT + 2, vT + 3))
    vDU = [vT + 8 + p for p in range(4)]
    for p in range(4):
        hh, qh = p >> 1, p & 1
        kk = 16 * qh + 4 * hh
        k('v_add_u32 v%d, %d, v%d' % (vDU[p], kk * 128 + 4096 - 1024 * p, vT + 3))
    k('s_lshl_b32 s%d, s%d, 3' % (sT, sR))
    k('s_add_u32 s%d, s%d, s%d' % (sT, sT, sEB))
    k('s_lshl_b32 s%d, s%d, 15' % (sT, sT))
    k('s_lshl_b32 s%d, s%d, 13' % (sT + 1, sWave))
    k('s_add_u32 s%d, s%d, s%d' % (sT, sT, sT + 1))
    k('s_add_u32 s%d, s%d, 0x1000' % (sT + 2, sT))
    k('s_lshl_b32 s%d, s%d, 2' % (sT + 3, sTB))
    k('s_add_u32 s%d, s%d, s%d' % (sT + 3, sT + 3, sWave))
    k('s_lshl_b32 s%d, s%d, 8' % (sT + 4, sT + 3))
    k('s_add_u32 s%d, s%d, s%d' % (sT + 4, sT + 4, sR))
    k('v_lshlrev_b32 v%d, 4, v%d' % (vTt, vN))
    k('v_add_u32 v%d, s%d, v%d' % (vTt, sT + 4, vTt))
    k('v_sub_u32 v%d, 0x800, v%d' % (vTm, vTt))
    k('v_and_b32 v%d, 0x7ff, v%d' % (vTm, vTm))
    k('v_and_b32 v%d, 1, v%d' % (vT, vQ))
    k('v_lshrrev_b32 v%d, 1, v%d' % (vT + 1, vQ))
    k('v_lshl_add_u32 v%d, v%d, 1, v%d' % (vCh, vT, vT + 1))
    k('v_lshlrev_b32 v%d, 11, v%d' % (vT + 4, vTt))
    k('v_lshl_add_u32 v%d, v%d, 4, v%d' % (vT + 4, vCh, vT + 4))
    k('v_lshlrev_b32 v%d, 11, v%d' % (vT + 5, vTm))
    k('v_lshlrev_b32 v%d, 4, v%d' % (vT + 6, vCh))
    k('v_sub_u32 v%d, v%d, v%d' % (vT + 5, vT + 5, vT + 6))
    k('v_add_u32 v%d, 48, v%d' % (vT + 5, vT + 5))
    k('s_lshl_b32 s%d, s%d, 7' % (sT + 5, sEB))
    k('s_sub_u32 s%d, %d, s%d' % (sT + 6, 2048 - 128, sT + 5))
    k('v_lshlrev_b32 v%d, 2, v%d' % (vT + 6, vTt))
    k('v_lshlrev_b32 v%d, 2, v%d' % (vT + 7, vTm))
    k('s_add_u32 s%d, s%d, 1' % (sT + 7, sEB))
    k('v_mov_b32 v%d, s%d' % (vT + 12, sT + 7))
    k('v_cmp_eq_u32 vcc, 0, v%d' % vN)
    k('s_mul_i32 s%d, s%d, 5120' % (sT + 7, sR))
    k('v_lshlrev_b32 v%d, 4, v%d' % (vT + 13, vQ))
    k('v_cndmask_b32 v%d, 9, v%d, vcc' % (vT + 12, vT + 12))
    k('v_lshl_add_u32 v%d, v%d, 9, v%d' % (vT + 12, vT + 12, vT + 13))
    k('s_waitcnt lgkmcnt(0)')
    srd(k, RU, sWS, 0x400000 + 4096, WS_U + 0x10000000 if False else 0)
    k('s_sub_u32 s%d, s%d, 0x1000' % (RU, RU))
    k('s_subb_u32 s%d, s%d, 0' % (RU + 1, RU + 1))
    assert WS_U == 0
    for half in range(2):
        k('s_add_u32 m0, s%d, %d' % (sT + 1, 4096 * half))
        k('s_nop 0')
        for p in range(4):
            k('buffer_load_dwordx4 v%d, s[%d:%d], s%d offen offset:%d lds' % (vDU[p], RU, RU + 3, sT + 2 * half, 1024 * p))
    srd(k, RX2, sWS, 16 * 10 * 512, WS_X2)
    k('s_mov_b32 s%d, 0x00030003' % (sT + 8))
    k('s_mov_b32 s%d, 0x00030003' % (sT + 9))
    k('s_mov_b64 exec, s[%d:%d]' % (sT + 8, sT + 9))
    for ks in range(8):
        k('buffer_load_dwordx4 %s, v%d, s[%d:%d], s%d offen offset:%d' % (vr(vE + 4 * ks, 4), vT + 12, RX2, RX2 + 3, sT + 7, 64 * ks))
    k('s_mov_b64 exec, -1')
    srd(k, RX, 8, 2048 * 2048)
    srd(k, RM, sWS, 8192, WS_XM)
    for be in range(2):
        k('buffer_load_dwordx4 %s, v%d, s[%d:%d], s%d offen offset:%d' % (vr(vXd + 4 * be, 4), vT + 4, RX, RX + 3, sT + 5, 64 * be))
        k('buffer_load_dwordx4 %s, v%d, s[%d:%d], s%d offen offset:%d' % (vr(vXm + 4 * be, 4), vT + 5, RX, RX + 3, sT + 6, 64 * (1 - be)))
    k('buffer_load_dword v%d, v%d, s[%d:%d], 0 offen' % (vMd, vT + 6, RM, RM + 3))
    k('buffer_load_dword v%d, v%d, s[%d:%d], 0 offen' % (vMm, vT + 7, RM, RM + 3))
    if pf:
        prefetch_w(k, pf, sWave, vLane, dict(wg=92, wu=94, wd=96), 60, sT + 8, vT + 16, vT + 31)
    if diag:
        stamp(k, 1)
    srd(k, RHC, sWS, 0x400000, WS_HC)
    srd(k, RH, sWS, 0x400000, WS_H)
    srd(k, RSS, sWS, 2048 * 64, WS_SS)
    A0, ST, C0, C1, S0, S1, BS, B32 = vT, vT + 1, vT + 2, vT + 3, vT + 4, vT + 5, vT + 6, vT + 7
    k('v_cvt_f32_u32 v%d, v%d' % (ST, vTt))
    k('v_mul_f32 v%d, %s, v%d' % (ST, f32hex(1 / 2048.), ST))
    k('v_cvt_f32_u32 v%d, v%d' % (BS, vQ))
    k('v_mul_f32 v%d, v%d, v%d' % (BS, BS, ST))
    k('v_mul_f32 v%d, %s, v%d' % (BS, f32hex(8.), BS))
    k('v_mul_f32 v%d, %s, v%d' % (B32, f32hex(32.), ST))
    k('v_fract_f32 v%d, v%d' % (B32, B32))
    for k4 in range(4):
        k('v_fract_f32 v%d, v%d' % (A0, BS))
        if k4 < 3:
            k('v_add_f32 v%d, v%d, v%d' % (BS, A0, B32))
        for p in range(4):
            k('v_cos_f32 v%d, v%d' % (C0, A0))
            k('v_sin_f32 v%d, -v%d' % (S0, A0))
            k('v_add_f32 v%d, v%d, v%d' % (A0, A0, ST))
            k('v_cos_f32 v%d, v%d' % (C1, A0))
            k('v_sin_f32 v%d, -v%d' % (S1, A0))
            k('v_add_f32 v%d, v%d, v%d' % (A0, A0, ST))
            k('v_cvt_pk_f16_f32 v%d, v%d, v%d' % (vB + 4 * k4 + p, C0, C1))
            k('v_cvt_pk_f16_f32 v%d, v%d, v%d' % (vB + 16 + 4 * k4 + p, S0, S1))
    k('v_lshrrev_b32 v%d, 2, v%d' % (vT, vLane))
    k('v_and_b32 v%d, 6, v%d' % (vT + 1, vT))
    k('v_and_b32 v%d, 3, v%d' % (vT + 2, vLane))
    k('v_lshlrev_b32 v%d, 3, v%d' % (vT + 2, vT + 2))
    k('v_lshl_add_u32 v%d, v%d, 7, v%d' % (vT + 2, vT, vT + 2))
    for b in range(4):
        k('v_xor_b32 v%d, %d, v%d' % (vT + 3, 2 * b, vT + 1))
        k('v_lshl_add_u32 v%d, v%d, 4, v%d' % (vRA[b], vT + 3, vT + 2))
    if diag:
        stamp(k, 2)
    k('s_waitcnt vmcnt(%d)' % (14 + len(pf)))
    k('s_barrier')
    if diag:
        stamp(k, 3)

    def reads(ks):
        for b in range(4):
            for hh in range(2):
                k('ds_read_b64_tr_b16 %s, v%d offset:%d' % (vr(vA + 16 * (ks & 1) + 4 * b + 2 * hh, 2), vRA[b], ks * 4096 + hh * 2048))

    reads(0)
    k('s_waitcnt vmcnt(%d)' % (6 + len(pf)))
    for ks in range(8):
        if ks < 7:
            reads(ks + 1)
        c = '0' if ks == 0 else None
        k('v_mfma_f32_16x16x32_f16 %s, %s, %s, %s' % (vr(vD + 16, 4), vr(vE + 4 * ks, 4), vr(vB + 4 * ks, 4), c or vr(vD + 16, 4)))
        for b in range(4):
            k('s_waitcnt lgkmcnt(%d)' % ((8 if ks < 7 else 0) + 2 * (3 - b)))
            k('v_mfma_f32_16x16x32_f16 %s, %s, %s, %s' % (vr(vD + 4 * b, 4), vr(vA + 16 * (ks & 1) + 4 * b, 4), vr(vB + 4 * ks, 4), c or vr(vD + 4 * b, 4)))
    if diag:
        stamp(k, 4)
    vOd, vOm, vSa, vBp, vBm = vT, vT + 1, vT + 2, vT + 3, vT + 4
    vY = vT + 6

    def tau_addr(dst, vt, ch_expr_reg):
        k('v_bfe_u32 v%d, v%d, 1, 3' % (vY, vt))
        k('v_lshlrev_b32 v%d, 19, v%d' % (dst, vY))
        k('v_and_b32 v%d, 1, v%d' % (vY, vt))
        k('v_lshl_add_u32 v%d, v%d, 13, v%d' % (dst, vY, dst))
        k('v_lshrrev_b32 v%d, 8, v%d' % (vY, vt))
        k('v_lshl_add_u32 v%d, v%d, 10, v%d' % (dst, vY, dst))
        k('v_bfe_u32 v%d, v%d, 4, 4' % (vY, vt))
        k('v_lshl_add_u32 v%d, v%d, 4, v%d' % (dst, vY, dst))
        k('v_lshl_add_u32 v%d, v%d, 8, v%d' % (dst, ch_expr_reg, dst))

    tau_addr(vOd, vTt, vCh)
    k('v_sub_u32 v%d, 3, v%d' % (vY + 1, vCh))
    tau_addr(vOm, vTm, vY + 1)
    k('s_lshl_b32 s%d, s%d, 15' % (sT, sEB))
    k('s_add_u32 s%d, s%d, 0x4000' % (sT + 1, sT))
    k('s_sub_u32 s%d, 0x%x, s%d' % (sT + 2, 31 * 16384, sT))
    k('s_sub_u32 s%d, s%d, 0x4000' % (sT + 3, sT + 2))
    k('v_cmp_gt_u32 vcc, 32, v%d' % vLane)
    k('v_lshrrev_b32 v%d, 5, v%d' % (vY + 1, vLane))
    k('s_nop 0')
    k('v_cndmask_b32 v%d, v%d, v%d, vcc' % (vY, vTm, vTt))
    k('v_and_b32 v%d, 15, v%d' % (vSa, vY))
    k('v_lshlrev_b32 v%d, 13, v%d' % (vSa, vSa))
    k('v_lshrrev_b32 v%d, 4, v%d' % (vY, vY))
    k('v_lshl_add_u32 v%d, v%d, 6, v%d' % (vSa, vY, vSa))
    k('v_lshl_add_u32 v%d, v%d, 5, v%d' % (vSa, vY + 1, vSa))
    k('s_lshl_b32 s%d, s%d, 2' % (sT + 4, sEB))
    k('v_lshlrev_b32 v%d, 2, v%d' % (vBm, vN))
    k('v_lshlrev_b32 v%d, 1, v%d' % (vY, vQ))
    k('v_lshrrev_b32 v%d, v%d, %s' % (vY, vY, 'v%d' % (vY + 1)) if False else 'v_mov_b32 v%d, 0x1e' % (vY + 1))
    k('v_lshrrev_b32 v%d, v%d, v%d' % (vY, vY, vY + 1))
    k('v_and_b32 v%d, 3, v%d' % (vY, vY))
    k('v_lshl_add_u32 v%d, v%d, 6, v%d' % (vBp, vY, vBm))
    k('v_cmp_gt_u32 vcc, 16, v%d' % vLane)
    for be in range(2):
        for i in range(4):
            k('v_permlane16_swap_b32 v%d, v%d' % (vD + 4 * be + i, vD + 8 + 4 * be + i))
    vF = vT + 8
    k('v_cndmask_b32 v%d, v%d, v%d, vcc' % (vF, vD, vD + 4))
    k('v_cndmask_b32 v%d, v%d, v%d, vcc' % (vF + 1, vD + 4, vD + 16))
    k('ds_bpermute_b32 v%d, v%d, v%d' % (vF, vBp, vF))
    k('ds_bpermute_b32 v%d, v%d, v%d' % (vF + 1, vBp, vF + 1))
    k('ds_bpermute_b32 v%d, v%d, v%d' % (vF + 2, vBm, vD + 17))
    k('s_waitcnt vmcnt(%d) lgkmcnt(0)' % len(pf))
    vMu = vT + 12
    k('v_add_f32 v%d, v%d, v%d' % (vMu, vMd, vF + 2))
    k('v_add_f32 v%d, v%d, v%d' % (vMu + 2, vMm, vF + 2))
    vS = vT + 16
    W = vB
    for mir in range(2):
        for be in range(2):
            el = [vD + 4 * be + i for i in range(4)] + [vD + 8 + 4 * be + i for i in range(4)]
            if mir:
                el = [vF + be] + el[:0:-1]
            X = (vXm if mir else vXd) + 4 * be
            w = W + 16 * (2 * mir + be)
            for i in range(4):
                k('v_lshlrev_b32 v%d, 16, v%d' % (w + 2 * i, X + i))
                k('v_and_b32 v%d, 0xffff0000, v%d' % (w + 2 * i + 1, X + i))
            for i in range(8):
                k('v_add_f32 v%d, v%d, v%d' % (w + i, w + i, el[i]))
            for i in range(4):
                k('v_cvt_pk_bf16_f32 v%d, v%d, v%d' % (X + i, w + 2 * i, w + 2 * i + 1))
            k('buffer_store_dwordx4 %s, v%d, s[%d:%d], s%d offen' % (vr(X, 4), vOm if mir else vOd, RH, RH + 3, sT + 2 * mir + be) + ' ' + stflag)
            for i in range(4):
                k('v_lshlrev_b32 v%d, 16, v%d' % (w + 2 * i, X + i))
                k('v_and_b32 v%d, 0xffff0000, v%d' % (w + 2 * i + 1, X + i))
            for i in range(4):
                k('v_pk_add_f32 %s, %s, %s op_sel_hi:[1,0] neg_lo:[0,1] neg_hi:[0,1]' % (vr(w + 2 * i, 2), vr(w + 2 * i, 2), vr(vMu + 2 * mir, 2)))
            for i in range(4):
                k('v_cvt_pk_bf16_f32 v%d, v%d, v%d' % (w + 8 + i, w + 2 * i, w + 2 * i + 1))
            k('buffer_store_dwordx4 %s, v%d, s[%d:%d], s%d offen' % (vr(w + 8, 4), vOm if mir else vOd, RHC, RHC + 3, sT + 2 * mir + be) + ' ' + stflag)
            s = vS + 2 * mir
            for i in range(4):
                if be == 0 and i == 0:
                    k('v_pk_mul_f32 %s, %s, %s' % (vr(s, 2), vr(w, 2), vr(w, 2)))
                else:
                    k('v_pk_fma_f32 %s, %s, %s, %s' % (vr(s, 2), vr(w + 2 * i, 2), vr(w + 2 * i, 2), vr(s, 2)))
    k('v_add_f32 v%d, v%d, v%d' % (vS, vS, vS + 1))
    k('v_add_f32 v%d, v%d, v%d' % (vS + 2, vS + 2, vS + 3))
    k('s_nop 1')
    k('v_permlane32_swap_b32 v%d, v%d' % (vS, vS + 2))
    k('v_add_f32 v%d, v%d, v%d' % (vS, vS, vS + 2))
    k('v_mov_b32 v%d, v%d' % (vS + 1, vS))
    k('s_nop 1')
    k('v_permlane16_swap_b32 v%d, v%d' % (vS, vS + 1))
    k('v_add_f32 v%d, v%d, v%d' % (vS, vS, vS + 1))
    k('buffer_store_dword v%d, v%d, s[%d:%d], s%d offen' % (vS, vSa, RSS, RSS + 3, sT + 4))
    if diag:
        stamp_flush(k, kidx, 6, sWS, 56, 2, 0)
    if pfe:
        prefetch_w(k, pfe, sWave, vLane, dict(wg=92, wu=94, wd=96), 60, sT + 8, vT + 24, vT + 31)
    k.label(done)
    k('s_endpgm')
    return dict(name=name, text=k.text(NV, NV), grid=256, block=256, lds=LDS, nst=6)
```

```python
from asmlib import *
from kc import f32hex, LOG2E


def gen_kc(diag=False, kidx=2, name='kc_kernel', LA=4, rot=8, rd_end=0.7, pf_wd=0, stflag='sc1', tokflag='', bar2=False,
           overlap=True, nodma=False, prio=False, xmap='8x4', pf_from=20, lead=0, S0=8, ndes=1, pf1=0):
    k = K(name)
    NW, NS, TB = 4, 5, 8
    NACC = TB * 7 * 4
    MB = NACC
    SLOT = 16384 + 7168 + 16 + 7168
    GOFF = 16384
    UOFF = 7184
    RS = NS * SLOT
    LDS = RS + 2048
    TD, WD = 4, 4
    D = TD + WD
    FSET = (TB + 7) * 4
    vTok = [MB + 0, MB + 1, MB + 2]
    vW = [MB + 3, MB + 4, MB + 5]
    vW6 = [MB + 6, MB + 7, MB + 8]
    vDT = MB + 9
    vDW = [MB + 10 + i for i in range(4)]
    vLane = MB + 14
    vPF = MB + 15
    vTab = MB + 31
    vT = MB + 16
    sWS, sWave, sRT, sCT, sTO, sWO, sRho, sMT, sMW = 4, 28, 29, 30, 31, 32, 33, 36, 37
    sEx = 38
    s4k = 40
    sT = 41
    RT, RW, RO, RSS, RP = 12, 16, 20, 24, 52

    def acc(j, b):
        return (j * 7 + b) * 4

    def fT(s, j):
        return s * FSET + j * 4

    def fW(s, b):
        return s * FSET + TB * 4 + b * 4

    done = k.newlabel('done')
    k('s_cmp_ge_u32 s2, 256')
    k('s_cbranch_scc1 %s' % done)
    if diag:
        stamp(k, 0)
    k('s_load_dwordx4 s[8:11], s[0:1], %d' % KARG['wg'])
    k('s_load_dwordx2 s[4:5], s[0:1], %d' % KARG['ws'])
    k('s_load_dwordx2 s[6:7], s[0:1], %d' % KARG['wd'])
    k('v_and_b32 v%d, 63, v0' % vLane)
    k('v_lshrrev_b32 v%d, 6, v0' % vT)
    k('v_mov_b32 v%d, v0' % (vT + 8))
    k('v_readfirstlane_b32 s%d, v%d' % (sWave, vT))
    k('s_and_b32 s%d, s2, 7' % sT)
    k('s_lshr_b32 s%d, s2, 3' % (sT + 1))
    if xmap == '8x4':
        k('s_lshr_b32 s%d, s%d, 2' % (sRT, sT + 1))
        k('s_and_b32 s%d, s%d, 3' % (sT + 1, sT + 1))
        k('s_lshl_b32 s%d, s%d, 2' % (sT, sT))
        k('s_add_u32 s%d, s%d, s%d' % (sCT, sT, sT + 1))
        k('s_lshl_b32 s%d, s%d, 1' % (sRho, sT + 1))
        k('s_add_u32 s%d, s%d, s%d' % (sRho, sRho, sRT))
    else:
        k('s_and_b32 s%d, s%d, 6' % (sRT, sT))
        k('s_lshr_b32 s%d, s%d, 4' % (sCT, sT + 1))
        k('s_add_u32 s%d, s%d, s%d' % (sRT, sRT, sCT))
        k('s_lshl_b32 s%d, s%d, 2' % (sRho, sCT))
        k('s_and_b32 s%d, s%d, 1' % (sCT, sT))
        k('s_lshl_b32 s%d, s%d, 4' % (sCT, sCT))
        k('s_and_b32 s%d, s%d, 15' % (sT + 1, sT + 1))
        k('s_add_u32 s%d, s%d, s%d' % (sCT, sCT, sT + 1))
        k('s_lshr_b32 s%d, s%d, 1' % (sT, sT))
        k('s_add_u32 s%d, s%d, s%d' % (sRho, sRho, sT))
        k('s_add_u32 s%d, s%d, s%d' % (sRho, sRho, sT + 1))
    if lead:
        k('s_and_b32 s%d, s%d, 7' % (sRho, sRho))
        order_table(k, 32, S0, lead, ndes, sRho, 34, vLane, vT + 1, vTab)
    k('s_and_b32 s%d, s%d, 1' % (sT + 2, sWave))
    k('s_lshr_b32 s%d, s%d, 1' % (sT + 3, sWave))
    k('v_lshlrev_b32 v%d, 4, v%d' % (vT, vLane))
    k('s_mul_i32 s%d, s%d, %d' % (sMT, sWave, TD * 1024))
    k('v_add_u32 v%d, s%d, v%d' % (vDT, sMT, vT))
    k('s_mul_i32 s%d, s%d, 16' % (sT + 4, sT + 3))
    k('s_mul_i32 s%d, s%d, 224' % (sT + 5, sCT))
    for i in range(WD):
        k('v_add_u32 v%d, %d, v%d' % (vT + 1, 64 * i, vLane))
        k('v_mul_u32_u24 v%d, 4682, v%d' % (vT + 2, vT + 1))
        k('v_lshrrev_b32 v%d, 16, v%d' % (vT + 2, vT + 2))
        k('v_mul_u32_u24 v%d, 14, v%d' % (vT + 3, vT + 2))
        k('v_sub_u32 v%d, v%d, v%d' % (vT + 3, vT + 1, vT + 3))
        k('v_add_u32 v%d, s%d, v%d' % (vT + 2, sT + 4, vT + 2))
        k('v_and_b32 v%d, 3, v%d' % (vT + 4, vT + 2))
        k('v_bfe_u32 v%d, v%d, 2, 2' % (vT + 5, vT + 2))
        k('v_lshl_add_u32 v%d, v%d, 3, v%d' % (vT + 4, vT + 5, vT + 4))
        k('v_bfe_u32 v%d, v%d, 4, 1' % (vT + 5, vT + 2))
        k('v_lshl_add_u32 v%d, v%d, 2, v%d' % (vT + 4, vT + 5, vT + 4))
        k('v_mul_u32_u24 v%d, 7168, v%d' % (vT + 4, vT + 4))
        k('v_lshl_add_u32 v%d, v%d, 4, v%d' % (vT + 4, vT + 3, vT + 4))
        k('v_add_u32 v%d, s%d, v%d' % (vT + 4, sT + 5, vT + 4))
        k('v_add_u32 v%d, %d, v%d' % (vDW[i], 4096 - 1024 * i, vT + 4))
    k('s_mul_i32 s%d, s%d, %d' % (sMW, sT + 2, UOFF))
    k('s_mul_i32 s%d, s%d, %d' % (sT + 4, sT + 3, 16 * 224))
    k('s_add_u32 s%d, s%d, s%d' % (sMW, sMW, sT + 4))
    k('s_add_u32 s%d, s%d, %d' % (sMW, sMW, GOFF))
    k('s_mov_b32 s%d, -1' % sEx)
    k('s_mov_b32 s%d, 0' % (sEx + 1))
    k('s_movk_i32 s%d, 0x1000' % s4k)
    k('s_lshl_b32 s%d, s%d, 19' % (sT, sRT))
    k('s_add_u32 s%d, s%d, 0x%x' % (sT, sT, WS_HC))
    k('s_waitcnt lgkmcnt(0)')
    if diag:
        stamp(k, 1)
    k('s_add_u32 s%d, s4, s%d' % (RT, sT))
    k('s_addc_u32 s%d, s5, 0' % (RT + 1))
    k('s_mov_b32 s%d, 0x80000' % (RT + 2))
    k('s_mov_b32 s%d, 0x20000' % (RT + 3))
    k('s_cmp_eq_u32 s%d, 0' % (sT + 2))
    k('s_cselect_b32 s%d, s8, s10' % RW)
    k('s_cselect_b32 s%d, s9, s11' % (RW + 1))
    k('s_sub_u32 s%d, s%d, 0x1000' % (RW, RW))
    k('s_subb_u32 s%d, s%d, 0' % (RW + 1, RW + 1))
    k('s_mov_b32 s%d, 0x%x' % (RW + 2, 1024 * 7168 + 4096))
    k('s_mov_b32 s%d, 0x20000' % (RW + 3))

    def dma_groups(st):
        slot = (st % NS) * SLOT
        g = []
        if lead:
            pre = ['v_readlane_b32 s%d, v%d, %d' % (sTO, vTab, st), 's_nop 1',
                   's_mul_i32 s%d, s%d, %d' % (sWO, sTO, 32 * 7168), 's_lshl_b32 s%d, s%d, 14' % (sTO, sTO)]
        elif rot:
            pre = ['s_add_u32 s%d, s%d, %d' % (sTO, sRho, st % rot), 's_and_b32 s%d, s%d, %d' % (sTO, sTO, rot - 1),
                   's_add_u32 s%d, s%d, %d' % (sTO, sTO, st - st % rot),
                   's_mul_i32 s%d, s%d, %d' % (sWO, sTO, 32 * 7168), 's_lshl_b32 s%d, s%d, 14' % (sTO, sTO)]
        else:
            pre = ['s_mov_b32 s%d, 0x%x' % (sTO, st << 14), 's_mov_b32 s%d, 0x%x' % (sWO, st * 32 * 7168)]
        for i in range(WD):
            ins = 'buffer_load_dwordx4 v%d, s[%d:%d], s%d offen offset:%d lds' % (vDW[i], RW, RW + 3, sWO, 1024 * i)
            if i == 0:
                g.append(['s_add_u32 m0, s%d, %d' % (sMW, slot)] + pre + [ins])
            elif i == WD - 1:
                g.append(['s_mov_b64 exec, s[%d:%d]' % (sEx, sEx + 1), ins, 's_mov_b64 exec, -1'])
            else:
                g.append([ins])
        for i in range(TD):
            ins = 'buffer_load_dwordx4 v%d, s[%d:%d], s%d offen offset:%d %s lds' % (vDT, RT, RT + 3, sTO, 1024 * i, tokflag)
            if i == 0:
                g.append(['s_add_u32 m0, s%d, %d' % (sMT, slot), 's_nop 0', ins])
            else:
                g.append([ins])
        return g

    def read_groups(st):
        s = st & 1
        sl = st % NS
        bi, so = sl >> 1, (sl & 1) * SLOT
        g = [['ds_read_b128 %s, v%d offset:%d' % (ar(fT(s, 0), 4), vTok[bi], so)]]
        for b in range(7):
            for hh in range(2):
                if b < 6:
                    off = hh * 3584 + 32 * (b % 3) + (UOFF if b >= 3 else 0)
                    g.append(['ds_read_b64_tr_b16 %s, v%d offset:%d' % (ar(fW(s, b) + 2 * hh, 2), vW[bi], so + off)])
                else:
                    g.append(['ds_read_b64_tr_b16 %s, v%d offset:%d' % (ar(fW(s, b) + 2 * hh, 2), vW6[bi], so + hh * 3584)])
        for j in range(1, TB):
            g.append(['ds_read_b128 %s, v%d offset:%d' % (ar(fT(s, j), 4), vTok[bi], so + 1024 * j)])
        return g

    def emit(groups):
        for grp in groups:
            for l in grp:
                k(l)

    emit(dma_groups(0))
    srd(k, RSS, sWS, 2048 * 64, WS_SS)
    k('s_lshl_b32 s%d, s%d, 14' % (sT, sRT))
    k('v_lshlrev_b32 v%d, 6, v%d' % (vT + 1, vT + 8))
    for i in range(4):
        k('buffer_load_dwordx4 v[%d:%d], v%d, s[%d:%d], s%d offen offset:%d' % (16 + 4 * i, 19 + 4 * i, vT + 1, RSS, RSS + 3, sT, 16 * i))
    emit(dma_groups(1))
    if diag:
        stamp(k, 2)
    srd(k, RO, sWS, 2048 * 3584 * 2, WS_ACT)
    srd(k, RP, 6, 3584 * 2048)
    k('s_mul_i32 s%d, s%d, %d' % (sT + 4, sT + 3, TB * 1024))
    k('v_add_u32 v%d, s%d, v%d' % (vTok[0], sT + 4, vT))
    k('v_lshrrev_b32 v%d, 2, v%d' % (vT + 1, vLane))
    k('v_mul_u32_u24 v%d, 224, v%d' % (vT + 1, vT + 1))
    k('s_mul_i32 s%d, s%d, 112' % (sT + 4, sT + 2))
    k('s_add_u32 s%d, s%d, %d' % (sT + 4, sT + 4, GOFF))
    k('v_add_u32 v%d, s%d, v%d' % (vT + 1, sT + 4, vT + 1))
    k('v_and_b32 v%d, 3, v%d' % (vT + 2, vLane))
    k('v_lshl_add_u32 v%d, v%d, 3, v%d' % (vW[0], vT + 2, vT + 1))
    k('v_lshrrev_b32 v%d, 1, v%d' % (vT + 3, vT + 2))
    k('v_lshl_add_u32 v%d, v%d, 3, v%d' % (vW6[0], vT + 3, vT + 1))
    k('v_and_b32 v%d, 1, v%d' % (vT + 3, vT + 2))
    k('v_mul_u32_u24 v%d, %d, v%d' % (vT + 3, UOFF, vT + 3))
    k('v_add3_u32 v%d, v%d, v%d, %d' % (vW6[0], vW6[0], vT + 3, 48))
    k('v_add_u32 v%d, 48, v%d' % (vW6[0], vW6[0]))
    for bi in (1, 2):
        for v in (vTok, vW, vW6):
            k('v_add_u32 v%d, %d, v%d' % (v[bi], 2 * bi * SLOT, v[0]))
    if pf_wd:
        k('s_lshr_b32 s%d, s2, 3' % (sT + 4))
        k('s_lshl_b32 s%d, s%d, 2' % (sT + 4, sT + 4))
        k('s_add_u32 s%d, s%d, s%d' % (sT + 4, sT + 4, sWave))
        k('s_lshl_b32 s%d, s%d, 14' % (sT + 4, sT + 4))
        k('s_and_b32 s%d, s2, 1' % (sT + 5))
        k('s_mul_i32 s%d, s%d, %d' % (sT + 5, sT + 5, 1024 + (1792 * 2048 if xmap != '8x4' else 0)))
        k('s_add_u32 s%d, s%d, s%d' % (sT + 4, sT + 4, sT + 5))
        k('v_lshrrev_b32 v%d, 3, v%d' % (vT + 1, vLane))
        k('v_lshlrev_b32 v%d, 11, v%d' % (vT + 1, vT + 1))
        k('v_and_b32 v%d, 7, v%d' % (vT + 2, vLane))
        k('v_lshl_add_u32 v%d, v%d, 7, v%d' % (vT + 1, vT + 2, vT + 1))
        k('v_add_u32 v%d, s%d, v%d' % (vPF, sT + 4, vT + 1))
    if pf1:
        k('v_min_u32 v%d, 55, v%d' % (vT + 1, vLane))
        k('v_lshlrev_b32 v%d, 7, v%d' % (vT + 1, vT + 1))
        k('s_lshl_b32 s%d, s2, 2' % (sT + 4))
        k('s_add_u32 s%d, s%d, s%d' % (sT + 4, sT + 4, sWave))
        k('s_mul_i32 s%d, s%d, 7168' % (sT + 4, sT + 4))
        k('v_add_u32 v%d, s%d, v%d' % (vPF, sT + 4, vT + 1))
    k('s_waitcnt vmcnt(%d)' % D)
    if diag:
        stamp(k, 3)
    for st in (8, 4, 2, 1):
        for i in range(st):
            k('v_add_f32 v%d, v%d, v%d' % (16 + i, 16 + i, 16 + i + st))
    k('v_mul_f32 v16, %s, v16' % f32hex(1.0 / 1024))
    k('v_cvt_pk_bf16_f32 v16, v16, v16')
    k('v_lshlrev_b32 v16, 16, v16')
    k('v_add_f32 v16, %s, v16' % f32hex(1e-5))
    k('v_cvt_pk_bf16_f32 v16, v16, v16')
    k('v_lshlrev_b32 v16, 16, v16')
    k('v_sqrt_f32 v16, v16')
    k('s_barrier')
    emit(read_groups(0))
    k('v_cvt_pk_bf16_f32 v16, v16, v16')
    k('v_lshlrev_b32 v16, 16, v16')
    k('v_rcp_f32 v18, v16')
    k('v_mul_f32 v19, v16, v16')
    k('v_mul_f32 v18, %s, v18' % f32hex(-LOG2E))
    k('v_lshlrev_b32 v17, 3, v%d' % (vT + 8))
    k('v_add_u32 v17, %d, v17' % RS)
    k('ds_write_b64 v17, v[18:19]')
    if diag:
        stamp(k, 4)

    vN, vQ, vA1, vA2, vA3, vR1, vR2 = vT, vT + 1, vT + 2, vT + 3, vT + 4, vT + 5, vT + 6
    vC = vT + 8
    vX = MB + 0
    assert vC % 2 == 0 and vX % 2 == 0
    vY = vT + 14

    setup = K('x')
    e = setup
    e('v_and_b32 v%d, 15, v%d' % (vN, vLane))
    e('v_lshrrev_b32 v%d, 4, v%d' % (vQ, vLane))
    e('s_mul_i32 s%d, s%d, 14' % (sT, sCT))
    e('s_mul_i32 s%d, s%d, 7' % (sT + 4, sT + 2))
    e('s_add_u32 s%d, s%d, s%d' % (sT, sT, sT + 4))
    e('s_lshl_b32 s%d, s%d, 1' % (sT + 5, sRT))
    e('s_add_u32 s%d, s%d, s%d' % (sT + 5, sT + 5, sT + 3))
    e('s_mul_i32 s%d, s%d, %d' % (sT + 5, sT + 5, 112 * 8192))

    def chunk_addr(dst, vfc_off, vtb_off):
        e('v_add_u32 v%d, s%d, v%d' % (vY, sT, vfc_off))
        e('v_lshrrev_b32 v%d, 2, v%d' % (vY + 1, vY))
        e('v_lshlrev_b32 v%d, 13, v%d' % (vY + 1, vY + 1))
        e('v_and_b32 v%d, 3, v%d' % (vY, vY))
        e('v_lshl_add_u32 v%d, v%d, 4, v%d' % (vY, vY, vN))
        e('v_lshl_add_u32 v%d, v%d, 4, v%d' % (vY, vY, vY + 1))
        if vtb_off is not None:
            e('v_lshl_add_u32 v%d, v%d, 10, v%d' % (vY, vtb_off, vY))
        e('v_add_u32 v%d, s%d, v%d' % (dst, sT + 5, vY))

    e('v_and_b32 v%d, 1, v%d' % (vR1, vQ))
    e('v_lshrrev_b32 v%d, 1, v%d' % (vR2, vQ))
    e('v_lshl_add_u32 v%d, v%d, 1, v%d' % (vC, vR1, vR2))
    chunk_addr(vA1, vC, None)
    e('v_add_u32 v%d, 4, v%d' % (vC, vR2))
    chunk_addr(vA2, vC, vR1)
    e('v_mov_b32 v%d, 6' % vC)
    chunk_addr(vA3, vC, vQ)
    e('s_mul_i32 s%d, s%d, %d' % (sT + 4, sT + 3, TB * 128))
    e('s_add_u32 s%d, s%d, %d' % (sT + 4, sT + 4, RS))
    e('v_lshlrev_b32 v%d, 3, v%d' % (vY, vN))
    e('v_lshl_add_u32 v%d, v%d, 7, v%d' % (vR2, vR1, vY))
    e('v_add_u32 v%d, s%d, v%d' % (vR1, sT + 4, vY))
    e('v_add_u32 v%d, s%d, v%d' % (vR2, sT + 4, vR2))
    setup_lines = [l.strip() for l in setup.lines]

    def epi_pair(jp):
        e = K('x')

        def swiglu(G, U, C):
            X = vX
            e('v_pk_mul_f32 %s, %s, %s op_sel_hi:[1,0]' % (vr(X, 2), vr(G, 2), vr(C, 2)))
            e('v_pk_mul_f32 %s, %s, %s op_sel_hi:[1,0]' % (vr(X + 2, 2), vr(G + 2, 2), vr(C, 2)))
            for i in range(4):
                e('v_exp_f32 v%d, v%d' % (X + i, X + i))
            e('v_pk_mul_f32 %s, %s, %s' % (vr(G, 2), vr(G, 2), vr(U, 2)))
            e('v_pk_fma_f32 %s, %s, %s, %s op_sel:[0,1,1] op_sel_hi:[1,1,1]' % (vr(X, 2), vr(X, 2), vr(C, 2), vr(C, 2)))
            e('v_pk_fma_f32 %s, %s, %s, %s op_sel:[0,1,1] op_sel_hi:[1,1,1]' % (vr(X + 2, 2), vr(X + 2, 2), vr(C, 2), vr(C, 2)))
            for i in range(4):
                e('v_rcp_f32 v%d, v%d' % (X + i, X + i))
            e('v_pk_mul_f32 %s, %s, %s' % (vr(G + 2, 2), vr(G + 2, 2), vr(U + 2, 2)))
            e('v_pk_mul_f32 %s, %s, %s' % (vr(G, 2), vr(G, 2), vr(X, 2)))
            e('v_pk_mul_f32 %s, %s, %s' % (vr(G + 2, 2), vr(G + 2, 2), vr(X + 2, 2)))

        def store(data, va, j):
            so = '0' if j < 4 else 's%d' % s4k
            e('buffer_store_dwordx4 %s, v%d, s[%d:%d], %s offen offset:%d %s' % (vr(data, 4), va, RO, RO + 3, so, 1024 * (j % 4), stflag))

        e('ds_read_b64 %s, v%d offset:%d' % (vr(vC, 2), vR1, 128 * jp))
        e('ds_read_b64 %s, v%d offset:%d' % (vr(vC + 2, 2), vR1, 128 * (jp + 1)))
        e('ds_read_b64 %s, v%d offset:%d' % (vr(vC + 4, 2), vR2, 128 * jp))
        A6, B6 = acc(jp, 6), acc(jp + 1, 6)
        e('s_waitcnt lgkmcnt(0)')
        for dj in range(2):
            j = jp + dj
            for b in range(3):
                swiglu(acc(j, b), acc(j, b + 3), vC + 2 * dj)
            if dj == 0:
                for i in range(4):
                    e('v_permlane16_swap_b32 v%d, v%d' % (A6 + i, B6 + i))
            P = acc(j, 3)
            e('v_cvt_pk_bf16_f32 v%d, v%d, v%d' % (P, acc(j, 0), acc(j, 0) + 1))
            e('v_cvt_pk_bf16_f32 v%d, v%d, v%d' % (P + 1, acc(j, 0) + 2, acc(j, 0) + 3))
            e('v_cvt_pk_bf16_f32 v%d, v%d, v%d' % (P + 2, acc(j, 1), acc(j, 1) + 1))
            e('v_cvt_pk_bf16_f32 v%d, v%d, v%d' % (P + 3, acc(j, 1) + 2, acc(j, 1) + 3))
            P2 = acc(jp, 4) + 2 * dj
            e('v_cvt_pk_bf16_f32 v%d, v%d, v%d' % (P2, acc(j, 2), acc(j, 2) + 1))
            e('v_cvt_pk_bf16_f32 v%d, v%d, v%d' % (P2 + 1, acc(j, 2) + 2, acc(j, 2) + 3))
            e('v_permlane16_swap_b32 v%d, v%d' % (P, P + 2))
            e('v_permlane16_swap_b32 v%d, v%d' % (P + 1, P + 3))
            store(P, vA1, j)
        swiglu(A6, B6, vC + 4)
        P2 = acc(jp, 4)
        e('v_permlane16_swap_b32 v%d, v%d' % (P2, P2 + 2))
        e('v_permlane16_swap_b32 v%d, v%d' % (P2 + 1, P2 + 3))
        store(P2, vA2, jp)
        jq = jp & ~3
        P3 = acc(jq, 5) + 2 * ((jp >> 1) & 1)
        e('v_cvt_pk_bf16_f32 v%d, v%d, v%d' % (P3, A6, A6 + 1))
        e('v_cvt_pk_bf16_f32 v%d, v%d, v%d' % (P3 + 1, A6 + 2, A6 + 3))
        if jp & 2:
            P3 = acc(jq, 5)
            e('s_nop 1')
            e('v_permlane32_swap_b32 v%d, v%d' % (P3, P3 + 2))
            e('v_permlane32_swap_b32 v%d, v%d' % (P3 + 1, P3 + 3))
            store(P3, vA3, jq)
        return [l.strip() for l in e.lines]

    plan = {s: [] for s in range(32)}
    nxt = 2
    for s in range(32):
        while nxt <= min(31, s + LA) and len(plan[s]) < 2:
            plan[s].append(nxt)
            nxt += 1
    oplog = [0] * D + [1] * D
    pf_at = [pf_from + 3 * n for n in range(pf_wd)]

    def mf(s, j, b):
        a = acc(j, b)
        c = '0' if s == 0 else vr(a, 4)
        return 'v_mfma_f32_16x16x32_bf16 %s, %s, %s, %s' % (vr(a, 4), ar(fW(s & 1, b), 4), ar(fT(s & 1, j), 4), c)

    for s in range(32):
        if s < 31:
            need = s + 1
            last = len(oplog) - 1 - oplog[::-1].index(need)
            k('s_waitcnt vmcnt(%d) lgkmcnt(0)' % min(63, len(oplog) - 1 - last))
            k('s_barrier')
        else:
            k('s_waitcnt lgkmcnt(0)')
        if diag and s == 1:
            stamp(k, 5)
        main = [mf(s, j, b) for j in range(TB) for b in range(7)]
        n = len(main)
        slots = [[] for _ in range(n)]
        rg = read_groups(s + 1) if s < 31 else []
        dg = []
        for st in plan[s]:
            if not nodma:
                dg += dma_groups(st)
            oplog.extend([st] * D)
        if pf_wd and s in pf_at:
            n_ = pf_at.index(s)
            dg.append(['s_mov_b32 s%d, 0x%x' % (sT + 6, n_ * 1024 * 2048),
                       'buffer_load_dword v%d, v%d, s[%d:%d], s%d offen' % (vT + 7, vPF, RP, RP + 3, sT + 6)])
            oplog.append('P')
        if pf1 and s == pf1:
            dg.append(['buffer_load_dword v%d, v%d, s[%d:%d], 0 offen' % (vT + 7, vPF, RP, RP + 3)])
            oplog.append('P')
        for i, g in enumerate(rg):
            slots[int(i * n * rd_end / len(rg))].append(g)
        for i, g in enumerate(dg):
            slots[min(n - 1, int((i + 0.5) * n / len(dg)))].append(g)
        if s == 30:
            for i, l in enumerate(setup_lines):
                slots[min(n - 1, int(n * 0.2 + i * n * 0.78 / len(setup_lines)))].append([l])
        if s == 31 and overlap:
            ep = epi_pair(0) + epi_pair(2)
            n0 = len(epi_pair(0))
            pos = 0
            for i in range(n):
                k(main[i])
                if i >= 14 + 3:
                    lim = n0 if i < 28 + 8 else len(ep)
                    for _ in range(2):
                        if pos < lim:
                            k(ep[pos])
                            pos += 1
            if diag:
                stamp(k, 6)
            for l in ep[pos:]:
                k(l)
            for jp in (4, 6):
                for l in epi_pair(jp):
                    k(l)
        else:
            for i in range(n):
                k(main[i])
                for g in slots[i]:
                    for l in g:
                        k(l)
    if not overlap:
        if diag:
            stamp(k, 6)
        k('s_nop 7')
        for jp in range(0, TB, 2):
            for l in epi_pair(jp):
                k(l)
    if diag:
        stamp_flush(k, kidx, 8, sWS, 48, 2, 0)
    k.label(done)
    k('s_endpgm')
    ao = MB + 32
    txt = k.text(ao + 2 * FSET, ao)
    return dict(name=name, text=txt, grid=256, block=256, lds=LDS, nst=8)
```

```python
from asmlib import *


def gen_kd(PD=2, diag=False, kidx=3, nomfma=False, name='kd_kernel', lead=4, ndes=2, tflag='', wflag='', stflag='', spf=0, spf_start=2, spf_wait=8, korder=''):
    k = K(name)
    NT = PD + 1
    NWS = 4
    NSTEP = 28
    RED = 65536
    LDS = 163840
    MB = 128
    vDT = [MB + i for i in range(4)]
    vDW = [MB + 4 + i for i in range(4)]
    vWR = [MB + 8 + i for i in range(4)]
    vLane = MB + 12
    vTab = MB + 13
    vRW = [MB + 14 + i for i in range(3)]
    vRR = MB + 17
    vAO = MB + 18
    vT = MB + 20
    vH = MB + 32
    NV = MB + 48
    if spf:
        assert PD == 1
        NV = MB + 32
    sWS, sWave, sTT, sCT, sTO, sWO, sMW, sNX = 4, 28, 29, 30, 31, 32, 34, 36
    sT = 40
    RT, RW, RO, RH = 12, 16, 20, 24

    def acc(j, b):
        return (j * 4 + b) * 4

    def fT(s, j):
        return s * 32 + j * 4

    def fW(s, b):
        return NT * 32 + s * 16 + b * 4

    done = k.newlabel('done')
    k('s_cmp_ge_u32 s2, 256')
    k('s_cbranch_scc1 %s' % done)
    if diag:
        stamp(k, 0)
    k('s_load_dwordx4 s[8:11], s[0:1], %d' % KARG['wd'])
    k('s_load_dwordx2 s[4:5], s[0:1], %d' % KARG['ws'])
    k('v_and_b32 v%d, 63, v0' % vLane)
    k('v_lshrrev_b32 v%d, 6, v0' % vT)
    k('s_and_b32 s%d, s2, 7' % sT)
    k('v_readfirstlane_b32 s%d, v%d' % (sWave, vT))
    k('s_lshr_b32 s%d, s2, 3' % (sT + 1))
    k('s_lshr_b32 s%d, s%d, 1' % (sT + 2, sT))
    k('s_lshl_b32 s%d, s%d, 2' % (sT + 2, sT + 2))
    k('s_lshr_b32 s%d, s%d, 3' % (sT + 3, sT + 1))
    k('s_add_u32 s%d, s%d, s%d' % (sTT, sT + 2, sT + 3))
    k('s_and_b32 s%d, s%d, 1' % (sT + 2, sT))
    k('s_lshl_b32 s%d, s%d, 3' % (sT + 2, sT + 2))
    k('s_and_b32 s%d, s%d, 7' % (sT + 3, sT + 1))
    k('s_add_u32 s%d, s%d, s%d' % (sCT, sT + 2, sT + 3))
    if lead:
        k('s_lshl_b32 s%d, s%d, 1' % (sT + 2, sTT))
        k('s_add_u32 s%d, s%d, s%d' % (sT + 2, sT + 2, sCT))
        k('s_and_b32 s%d, s%d, 7' % (sT + 2, sT + 2))
        pat = ((1 << ndes) - 1) * 0x01010101
        k('s_mov_b32 s%d, 0x%x' % (sT + 4, pat))
        k('s_mov_b32 s%d, 0x%x' % (sT + 5, pat))
        k('s_lshl_b64 s[%d:%d], s[%d:%d], s%d' % (sT + 4, sT + 5, sT + 4, sT + 5, sT + 2))
        k('s_and_b32 s%d, s%d, 0x0fffffff' % (sT + 5, sT + 5))
        M = sT + 5
        k('v_lshrrev_b32 v%d, v%d, s%d' % (vT, vLane, M) if False else 'v_mov_b32 v%d, s%d' % (vT + 1, M))
        k('v_lshrrev_b32 v%d, v%d, v%d' % (vT, vLane, vT + 1))
        k('v_and_b32 v%d, 1, v%d' % (vT, vT))
        k('v_cmp_eq_u32 vcc, 1, v%d' % vT)
        k('v_subrev_u32 v%d, %d, v%d' % (vT + 2, lead, vLane))
        k('v_max_i32 v%d, 0, v%d' % (vT + 2, vT + 2))
        k('v_add_u32 v%d, %d, v%d' % (vT + 3, lead + 1, vLane))
        k('v_min_u32 v%d, 28, v%d' % (vT + 3, vT + 3))
        k('v_cndmask_b32 v%d, v%d, v%d, vcc' % (vT + 2, vLane, vT + 2))
        k('v_cndmask_b32 v%d, v%d, v%d, vcc' % (vT + 3, vT + 3, vLane))
        k('v_bfm_b32 v%d, v%d, 0' % (vT + 4, vT + 2))
        k('v_and_b32 v%d, v%d, v%d' % (vT + 4, vT + 4, vT + 1))
        k('v_bcnt_u32_b32 v%d, v%d, 0' % (vT + 4, vT + 4))
        k('v_sub_u32 v%d, v%d, v%d' % (vT + 2, vT + 2, vT + 4))
        k('v_bfm_b32 v%d, v%d, 0' % (vT + 4, vT + 3))
        k('v_and_b32 v%d, v%d, v%d' % (vT + 4, vT + 4, vT + 1))
        k('v_bcnt_u32_b32 v%d, v%d, v%d' % (vT + 2, vT + 4, vT + 2))
        k('v_cmp_gt_u32 vcc, 28, v%d' % vLane)
        k('s_nop 1')
        k('v_cndmask_b32 v%d, v%d, v%d, vcc' % (vT + 2, vLane, vT + 2))
        k('v_lshlrev_b32 v%d, 2, v%d' % (vT + 2, vT + 2))
        k('ds_permute_b32 v%d, v%d, v%d' % (vTab, vT + 2, vLane))
    else:
        k('v_mov_b32 v%d, v%d' % (vTab, vLane))
    k('v_lshlrev_b32 v%d, 4, v%d' % (vT, vLane))
    for p in range(4):
        k('s_add_u32 s%d, s%d, %d' % (sT + 2, sWave, p + 1))
        k('s_and_b32 s%d, s%d, 3' % (sT + 2, sT + 2))
        k('s_lshl_b32 s%d, s%d, 11' % (sT + 3, sT + 2))
        k('v_add_u32 v%d, s%d, v%d' % (vDT[p], sT + 3, vT))
        k('s_mul_i32 s%d, s%d, %d' % (sT + 3, sT + 2, 3 * 8192))
        k('s_add_u32 s%d, s%d, %d' % (sT + 3, sT + 3, RED + (p % 3) * 8192))
        k('v_add_u32 v%d, s%d, v%d' % (vRW[p] if p < 3 else vRR, sT + 3, vT))
    k('v_lshrrev_b32 v%d, 3, v%d' % (vT, vLane))
    k('v_and_b32 v%d, 6, v%d' % (vT + 1, vT))
    k('v_and_b32 v%d, 7, v%d' % (vT + 2, vLane))
    k('v_xor_b32 v%d, v%d, v%d' % (vT + 2, vT + 2, vT + 1))
    k('v_and_b32 v%d, 3, v%d' % (vT + 3, vT))
    k('v_lshrrev_b32 v%d, 2, v%d' % (vT + 4, vT))
    k('v_lshl_add_u32 v%d, v%d, 3, v%d' % (vT + 3, vT + 4, vT + 3))
    k('v_lshlrev_b32 v%d, 11, v%d' % (vT + 3, vT + 3))
    k('v_lshl_add_u32 v%d, v%d, 4, v%d' % (vT + 3, vT + 2, vT + 3))
    k('s_lshl_b32 s%d, s%d, 7' % (sT + 2, sCT))
    k('v_add_u32 v%d, s%d, v%d' % (vT + 3, sT + 2, vT + 3))
    for p in range(4):
        hh, qh = p >> 1, p & 1
        kk = 16 * qh + 4 * hh
        k('v_add_u32 v%d, %d, v%d' % (vDW[p], kk * 2048 + 4096 - 1024 * p, vT + 3))
    k('s_lshl_b32 s%d, s%d, 14' % (sMW, sWave))
    k('s_mul_i32 s%d, s%d, %d' % (sT, sTT, 112 * 8192))
    k('s_add_u32 s%d, s%d, 0x%x' % (sT, sT, WS_ACT))
    k('s_waitcnt lgkmcnt(0)')
    if diag:
        stamp(k, 1)
    pfl = k.newlabel('pf')
    if spf:
        k('s_cmp_ge_u32 s%d, 4' % sWave)
        k('s_cbranch_scc1 %s' % pfl)
    if korder == '':
        k('v_lshlrev_b32 v%d, 2, v%d' % (vTab, vTab))
        k('v_add_u32 v%d, s%d, v%d' % (vTab, sWave, vTab))
    elif korder == 'wave':
        k('s_lshr_b32 s%d, s%d, 1' % (sT + 2, sWave))
        k('s_xor_b32 s%d, s%d, s2' % (sT + 2, sT + 2))
        k('s_and_b32 s%d, s%d, 1' % (sT + 2, sT + 2))
        k('s_mul_i32 s%d, s%d, 56' % (sT + 2, sT + 2))
        k('s_and_b32 s%d, s%d, 1' % (sT + 3, sWave))
        k('s_add_u32 s%d, s%d, s%d' % (sT + 2, sT + 2, sT + 3))
        k('v_lshlrev_b32 v%d, 1, v%d' % (vTab, vTab))
        k('v_add_u32 v%d, s%d, v%d' % (vTab, sT + 2, vTab))
    elif korder in ('alt', 'first'):
        if korder == 'alt':
            k('s_lshr_b32 s%d, s%d, 1' % (sT + 2, sWave))
            k('s_xor_b32 s%d, s%d, s2' % (sT + 2, sT + 2))
            k('v_xor_b32 v%d, s%d, v%d' % (vT, sT + 2, vTab))
            k('v_and_b32 v%d, 1, v%d' % (vT, vT))
            k('v_mul_u32_u24 v%d, 56, v%d' % (vT, vT))
            k('v_lshrrev_b32 v%d, 1, v%d' % (vTab, vTab))
            k('v_lshl_add_u32 v%d, v%d, 2, v%d' % (vTab, vTab, vT))
            k('v_add_u32 v%d, s%d, v%d' % (vTab, sWave, vTab))
        else:
            k('s_and_b32 s%d, s2, 1' % (sT + 2))
            k('s_mul_i32 s%d, s%d, 14' % (sT + 2, sT + 2))
            k('v_add_u32 v%d, s%d, v%d' % (vTab, sT + 2, vTab))
            k('v_subrev_u32 v%d, 28, v%d' % (vT, vTab))
            k('v_min_u32 v%d, v%d, v%d' % (vTab, vTab, vT))
            k('v_lshlrev_b32 v%d, 2, v%d' % (vTab, vTab))
            k('v_add_u32 v%d, s%d, v%d' % (vTab, sWave, vTab))
    k('v_lshlrev_b32 v%d, 13, v%d' % (vTab, vTab))
    k('s_add_u32 s%d, s4, s%d' % (RT, sT))
    k('v_readlane_b32 s%d, v%d, 0' % (sNX, vTab))
    k('s_addc_u32 s%d, s5, 0' % (RT + 1))
    k('s_mov_b32 s%d, 0x%x' % (RT + 2, 112 * 8192))
    k('s_mov_b32 s%d, 0x20000' % (RT + 3))
    k('s_sub_u32 s%d, s8, 0x1000' % RW)
    k('s_subb_u32 s%d, s9, 0' % (RW + 1))
    k('s_mov_b32 s%d, 0x%x' % (RW + 2, 3584 * 2048 + 4096))
    k('s_mov_b32 s%d, 0x20000' % (RW + 3))
    k('s_lshl_b32 s%d, s%d, 3' % (sWO, sNX))

    def wdma(i, p):
        g = []
        if p == 0:
            g += ['s_add_u32 m0, s%d, %d' % (sMW, (i % NWS) * 4096), 's_nop 0']
        g.append('buffer_load_dwordx4 v%d, s[%d:%d], s%d offen offset:%d %s lds' % (vDW[p], RW, RW + 3, sWO, 1024 * p, wflag))
        return g

    def advance(i):
        g = ['s_mov_b32 s%d, s%d' % (sTO, sNX)]
        if i + 1 < NSTEP:
            g += ['v_readlane_b32 s%d, v%d, %d' % (sNX, vTab, i + 1), 's_nop 2', 's_lshl_b32 s%d, s%d, 3' % (sWO, sNX)]
        return g

    def tload(i, j):
        return ['buffer_load_dwordx4 %s, v%d, s[%d:%d], s%d offen offset:%d %s' % (ar(fT(i % NT, j), 4), vDT[j >> 1], RT, RT + 3, sTO, 1024 * (j & 1), tflag)]

    def wread(i, idx):
        b, hh = idx >> 1, idx & 1
        return ['ds_read_b64_tr_b16 %s, v%d offset:%d' % (ar(fW(i % 2, b) + 2 * hh, 2), vWR[b], (i % NWS) * 4096 + hh * 2048)]

    log = []

    def issue(lines, op):
        log.append(op)
        return lines

    def group_ops(i):
        out = {j: [] for j in range(8)}
        for j in range(8):
            if i + 1 < NSTEP:
                for p in {0: [0, 1], 1: [2, 3]}.get(j, []):
                    out[j].append((('W', i + 1, p), wdma(i + 1, p)))
            l = tload(i, j)
            if j == 7 and i + 1 < NSTEP:
                l = l + advance(i + 1)
            out[j].append((('T', i, j), l))
        return out

    def need(op):
        return len(log) - 1 - log.index(op)

    for p in range(4):
        for l in issue(wdma(0, p), ('W', 0, p)):
            k(l)
    for l in advance(0):
        k(l)
    for i in range(PD):
        go = group_ops(i)
        for j in range(8):
            for op, lines in go[j]:
                for l in issue(lines, op):
                    k(l)
    k('v_lshrrev_b32 v%d, 2, v%d' % (vT, vLane))
    k('v_and_b32 v%d, 6, v%d' % (vT + 1, vT))
    k('v_and_b32 v%d, 3, v%d' % (vT + 2, vLane))
    k('v_lshlrev_b32 v%d, 3, v%d' % (vT + 2, vT + 2))
    k('v_lshl_add_u32 v%d, v%d, 7, v%d' % (vT + 2, vT, vT + 2))
    k('v_add_u32 v%d, s%d, v%d' % (vT + 2, sMW, vT + 2))
    for b in range(4):
        k('v_xor_b32 v%d, %d, v%d' % (vT + 3, 2 * b, vT + 1))
        k('v_lshl_add_u32 v%d, v%d, 4, v%d' % (vWR[b], vT + 3, vT + 2))
    srd(k, RO, 10, 2048 * 2048)
    srd(k, RH, sWS, 2048 * 2048, WS_H)
    vN, vQ, vCh, vAH = vT, vT + 1, vT + 2, vT + 3
    vX = vT + 4
    k('v_and_b32 v%d, 15, v%d' % (vN, vLane))
    k('v_lshrrev_b32 v%d, 4, v%d' % (vQ, vLane))
    k('v_and_b32 v%d, 1, v%d' % (vX, vQ))
    k('v_lshrrev_b32 v%d, 1, v%d' % (vX + 1, vQ))
    k('v_lshl_add_u32 v%d, v%d, 1, v%d' % (vCh, vX, vX + 1))
    k('s_lshl_b32 s%d, s%d, 3' % (sT + 2, sTT))
    k('s_lshl_b32 s%d, s%d, 1' % (sT + 3, sWave))
    k('s_add_u32 s%d, s%d, s%d' % (sT + 2, sT + 2, sT + 3))
    k('s_lshr_b32 s%d, s%d, 4' % (sT + 3, sT + 2))
    k('s_lshl_b32 s%d, s%d, 4' % (sT + 3, sT + 3))
    k('s_add_u32 s%d, s%d, s%d' % (sT + 3, sT + 3, sCT))
    k('s_lshl_b32 s%d, s%d, 15' % (sT + 3, sT + 3))
    k('s_and_b32 s%d, s%d, 15' % (sT + 4, sT + 2))
    k('s_lshl_b32 s%d, s%d, 10' % (sT + 4, sT + 4))
    k('s_add_u32 s%d, s%d, s%d' % (sT + 3, sT + 3, sT + 4))
    k('s_add_u32 s%d, s%d, 0x4000' % (sT + 4, sT + 3))
    k('v_lshl_add_u32 v%d, v%d, 4, v%d' % (vAH, vCh, vN))
    k('v_lshlrev_b32 v%d, 4, v%d' % (vAH, vAH))
    k('s_lshl_b32 s%d, s%d, 20' % (sT + 5, sWave))
    k('s_lshl_b32 s%d, s%d, 11' % (sT + 6, sTT))
    k('s_add_u32 s%d, s%d, s%d' % (sT + 5, sT + 5, sT + 6))
    k('s_lshl_b32 s%d, s%d, 7' % (sT + 6, sCT))
    k('s_add_u32 s%d, s%d, s%d' % (sT + 5, sT + 5, sT + 6))
    k('s_add_u32 s%d, s%d, 0x80000' % (sT + 6, sT + 5))
    k('v_lshlrev_b32 v%d, 15, v%d' % (vAO, vN))
    k('v_lshl_add_u32 v%d, v%d, 4, v%d' % (vAO, vCh, vAO))

    aH = fT((NSTEP - 2) % NT, 0)

    def hreg(dj, be):
        return ar(aH + 8 * dj + 4 * be, 4) if spf else vr(vH + 8 * dj + 4 * be, 4)

    def hloads():
        g = []
        for dj in range(2):
            for be in range(2):
                g.append((('H', dj, be), ['buffer_load_dwordx4 %s, v%d, s[%d:%d], s%d offen offset:%d' % (hreg(dj, be), vAH, RH, RH + 3, sT + 3 + be, 1024 * dj)]))
        return g

    k('s_waitcnt vmcnt(%d)' % need(('W', 0, 3)))
    for idx in range(8):
        for l in wread(0, idx):
            k(l)
    if diag:
        stamp(k, 2)
    for i in range(NSTEP):
        go = group_ops(i + PD) if i + PD < NSTEP else {j: [] for j in range(8)}
        if i == NSTEP - 3 and not spf:
            for j, h in enumerate(hloads()):
                go[6 + (j >> 1)].append(h)
        if i == NSTEP - 1 and spf:
            for j, h in enumerate(hloads()):
                go[j >> 1].append(h)
        pend = []
        for j in range(8):
            n = need(('T', i, j))
            k('s_waitcnt vmcnt(%d)%s' % (n, ' lgkmcnt(0)' if j == 0 else ''))
            side = [issue(lines, op) for op, lines in go[j]]
            if 2 <= j <= 5 and i + 1 < NSTEP:
                side.append(wread(i + 1, 2 * (j - 2)))
                side.append(wread(i + 1, 2 * (j - 2) + 1))
            if i == NSTEP - 1 and j >= 2:
                jj = j - 2
                side = [['ds_write_b128 v%d, %s offset:%d' % (vRW[jj >> 1], vr(acc(jj, b), 4), ((jj & 1) * 4 + b) * 1024)] for b in range(4)]
            assert len(side) <= 4
            for b in range(4):
                a = acc(j, b)
                c = '0' if i == 0 else vr(a, 4)
                if nomfma:
                    k('s_nop 0')
                else:
                    k('v_mfma_f32_16x16x32_bf16 %s, %s, %s, %s' % (vr(a, 4), ar(fW(i % 2, b), 4), ar(fT(i % NT, j), 4), c))
                if b < len(side):
                    for l in side[b]:
                        k(l)
    if diag:
        stamp(k, 3)
    k('s_waitcnt lgkmcnt(0)')
    k('s_barrier')
    for idx in range(3):
        for qd in range(8):
            k('ds_read_b128 %s, v%d offset:%d' % (vr(32 * idx + 4 * qd, 4), vRR, idx * 8192 + qd * 1024))
    own = acc(6, 0)
    for idx in range(3):
        k('s_waitcnt lgkmcnt(%d)' % min(15, 8 * (2 - idx)))
        for r in range(0, 32, 2):
            k('v_pk_add_f32 %s, %s, %s' % (vr(own + r, 2), vr(own + r, 2), vr(32 * idx + r, 2)))
    k('s_waitcnt vmcnt(0)')
    if spf:
        vH = 0
        for r in range(16):
            k('v_accvgpr_read_b32 v%d, a%d' % (r, aH + r))
    for dj in range(2):
        for be in range(2):
            A = own + (dj * 4 + 2 * be) * 4
            B = A + 4
            for i in range(4):
                k('v_permlane16_swap_b32 v%d, v%d' % (A + i, B + i))
            H = vH + 8 * dj + 4 * be
            for i in range(4):
                D0 = A + 2 * i
                k('v_lshlrev_b32 v%d, 16, v%d' % (vX + 2, H + i))
                k('v_and_b32 v%d, 0xffff0000, v%d' % (vX + 3, H + i))
                k('v_pk_add_f32 %s, %s, %s' % (vr(D0, 2), vr(D0, 2), vr(vX + 2, 2)))
                k('v_cvt_pk_bf16_f32 v%d, v%d, v%d' % (H + i, D0, D0 + 1))
            k('buffer_store_dwordx4 %s, v%d, s[%d:%d], s%d offen offset:%d %s' % (vr(H, 4), vAO, RO, RO + 3, sT + 5 + dj, 64 * be, stflag))
    if diag:
        k('s_waitcnt vmcnt(0)')
        stamp_flush(k, kidx, 5, sWS, 48, 2, 0)
    if spf:
        k('s_endpgm')
        k.label(pfl)
        wl = k.newlabel('pfw')
        go_ = k.newlabel('pfgo')
        k('s_and_b32 s%d, s%d, 1' % (sT + 2, sWave))
        k('s_cmp_ge_u32 s%d, 6' % sWave)
        k('s_cbranch_scc1 %s' % wl)
        k('s_and_b32 s%d, s%d, 7' % (sT + 3, sCT))
        k('s_lshl_b32 s%d, s%d, 12' % (sT + 3, sT + 3))
        k('s_lshl_b32 s%d, s%d, 11' % (sT + 2, sT + 2))
        k('s_add_u32 s%d, s%d, s%d' % (sT + 3, sT + 3, sT + 2))
        k('s_add_u32 s%d, s%d, s%d' % (sT + 3, sT + 3, sT))
        k('s_add_u32 s%d, s%d, %d' % (sT + 3, sT + 3, spf_start * 32768))
        k('s_add_u32 s12, s4, s%d' % (sT + 3))
        k('s_addc_u32 s13, s5, 0')
        la = k.newlabel('pfa')
        k('s_mov_b32 s%d, %d' % (sT + 4, spf_start))
        k.label(la)
        for n in range(16):
            k('s_load_dword s%d, s[12:13], 0x%x' % (64 + n, 128 * n))
            if n % 4 == 3:
                k('s_waitcnt lgkmcnt(%d)' % spf_wait)
        k('s_add_u32 s12, s12, 0x8000')
        k('s_addc_u32 s13, s13, 0')
        k('s_add_u32 s%d, s%d, 1' % (sT + 4, sT + 4))
        k('s_cmp_lt_u32 s%d, %d' % (sT + 4, NSTEP))
        k('s_cbranch_scc1 %s' % la)
        k('s_endpgm')
        k.label(wl)
        k('s_and_b32 s%d, s%d, 3' % (sT + 3, sTT))
        k('s_lshl_b32 s%d, s%d, 16' % (sT + 3, sT + 3))
        k('s_lshl_b32 s%d, s%d, 15' % (sT + 2, sT + 2))
        k('s_add_u32 s%d, s%d, s%d' % (sT + 3, sT + 3, sT + 2))
        k('s_lshl_b32 s%d, s%d, 7' % (sT + 2, sCT))
        k('s_add_u32 s%d, s%d, s%d' % (sT + 3, sT + 3, sT + 2))
        k('s_add_u32 s%d, s%d, %d' % (sT + 3, sT + 3, spf_start * 262144))
        k('s_add_u32 s12, s8, s%d' % (sT + 3))
        k('s_addc_u32 s13, s9, 0')
        lb = k.newlabel('pfb')
        k('s_mov_b32 s%d, %d' % (sT + 4, spf_start))
        k.label(lb)
        for n in range(16):
            k('s_load_dword s%d, s[12:13], 0x%x' % (64 + n, 2048 * n))
            if n % 4 == 3:
                k('s_waitcnt lgkmcnt(%d)' % spf_wait)
        k('s_add_u32 s12, s12, 0x40000')
        k('s_addc_u32 s13, s13, 0')
        k('s_add_u32 s%d, s%d, 1' % (sT + 4, sT + 4))
        k('s_cmp_lt_u32 s%d, %d' % (sT + 4, NSTEP))
        k('s_cbranch_scc1 %s' % lb)
    k.label(done)
    k('s_endpgm')
    txt = k.text(NV + NT * 32 + 32, NV)
    return dict(name=name, text=txt, grid=256, block=512 if spf else 256, lds=LDS, nst=5)
```

```python
from asmlib import *
from build import build
from ka import gen_ka
from kb import gen_kb
import kc, kc2, kd, kd2
def nop_kernel(name):
    k = K(name); k('s_endpgm')
    return dict(name=name, text=k.text(8, 8), grid=256, block=256, lds=0)
A = gen_ka(); B = gen_kb(pf=['gu8']); C = kc2.gen_kc(lead=6, S0=8, pf1=27); D = kd2.gen_kd(PD=2, lead=2)
N = nop_kernel('nop_kernel')
n = ['ka_kernel', 'kb_kernel', 'kc_kernel', 'kd_kernel']
open('e1.s','w').write(build([A,B,C,D]))
open('e2.s','w').write(build([A,B,C,D,N], n + ['nop_kernel'] * 4))
open('e3.s','w').write(build([A,B,kc.gen_kc(NW=4),D]))
open('e4.s','w').write(build([A,B,C,kd.gen_kd(PD=1, rot=7)]))
open('e5.s','w').write(build([A,B,C,D], ['ka_kernel', 'kb_kernel'] + n))
open('e6.s','w').write(build([A,B,C,D], n + n[2:]))
```

```python
from asmlib import *
from kc import f32hex

WS_X2 = WS_U + 0x400000


def gen_ka(diag=False, kidx=0, name='ka_kernel', pf=(), pfe=(), warm=''):
    k = K(name)
    ROW = 544
    LDS = 32 * ROW
    sWS, sWave, sG, sHF = 4, 28, 29, 30
    sT = 32
    sM = 40
    sR = 44
    sNq = 48
    RX, RU, RX2, RM = 12, 16, 20, 24
    vX = 0
    vE = 32
    vF2c, vF2s, vC3, vS3, vS3n, vGr, vGi = 96, 100, 104, 108, 112, 116, 120
    vTc, vTs = 124, 132
    vLane, vN, vQ = 140, 141, 142
    vT = 144
    NV = 176

    done = k.newlabel('done')
    k('s_cmp_ge_u32 s2, 256')
    k('s_cbranch_scc1 %s' % done)
    if diag:
        stamp(k, 0)
    k('s_load_dwordx2 s[8:9], s[0:1], %d' % KARG['x'])
    k('s_load_dwordx2 s[4:5], s[0:1], %d' % KARG['ws'])
    if warm:
        k('s_load_dwordx2 s[98:99], s[0:1], %d' % KARG['out'])
    if pf or pfe or warm:
        k('s_load_dwordx4 s[92:95], s[0:1], %d' % KARG['wg'])
        k('s_load_dwordx2 s[96:97], s[0:1], %d' % KARG['wd'])
    k('v_and_b32 v%d, 63, v0' % vLane)
    k('v_lshrrev_b32 v%d, 6, v0' % vT)
    k('v_and_b32 v%d, 15, v0' % vN)
    k('v_readfirstlane_b32 s%d, v%d' % (sWave, vT))
    k('v_lshrrev_b32 v%d, 4, v%d' % (vQ, vLane))
    k('s_and_b32 s%d, s2, 7' % sT)
    k('s_lshr_b32 s%d, s2, 4' % (sT + 1))
    k('s_lshl_b32 s%d, s%d, 3' % (sT + 1, sT + 1))
    k('s_add_u32 s%d, s%d, s%d' % (sG, sT, sT + 1))
    k('s_bfe_u32 s%d, s2, 0x10003' % sHF)
    k('v_lshlrev_b32 v%d, 2, v%d' % (vT, vN))
    k('v_lshl_add_u32 v%d, v%d, 9, v%d' % (vT, vQ, vT))
    k('s_lshl_b32 s%d, s%d, 9' % (sT, sWave))
    k('s_add_u32 s%d, s%d, s%d' % (sT, sT, sG))
    k('s_lshl_b32 s%d, s%d, 11' % (sT, sT))
    for jj in range(1, 4):
        k('s_add_u32 s%d, s%d, 0x%x' % (sT + jj, sT, jj * 128 * 2048))
    k('s_waitcnt lgkmcnt(0)')
    srd(k, RX, 8, 2048 * 2048)
    for jj in range(4):
        for i in range(8):
            k('buffer_load_dword v%d, v%d, s[%d:%d], s%d offen offset:%d' % (vX + 8 * jj + i, vT, RX, RX + 3, sT + jj, 64 * i))
    if pf:
        prefetch_w(k, pf, sWave, vLane, dict(wg=92, wu=94, wd=96), 60, sT + 4, vT + 2, vT + 31)
    nwarm = 0
    if 'c' in warm:
        k('s_getpc_b64 s[60:61]')
        k.label('L_ka_pc')
        k('s_sub_u32 s60, s60, L_ka_pc-ka_kernel')
        k('s_subb_u32 s61, s61, 0')
        k('s_mov_b32 s62, L_code_end-ka_kernel')
        k('s_mov_b32 s63, 0x20000')
        k('s_lshr_b32 s%d, s2, 3' % (sT + 4))
        k('s_lshl_b32 s%d, s%d, 2' % (sT + 4, sT + 4))
        k('s_add_u32 s%d, s%d, s%d' % (sT + 4, sT + 4, sWave))
        k('s_lshl_b32 s%d, s%d, 13' % (sT + 4, sT + 4))
        k('v_lshlrev_b32 v%d, 7, v%d' % (vT + 2, vLane))
        k('buffer_load_dword v%d, v%d, s[60:63], s%d offen' % (vT + 31, vT + 2, sT + 4))
        nwarm += 1
    if 't' in warm:
        jobs = [(92, 0, 1024 * 7168), (92, 64 << 16, 1024 * 7168), (94, 0, 1024 * 7168), (94, 64 << 16, 1024 * 7168),
                (96, 0, 1024 * 7168), (96, 64 << 16, 1024 * 7168), (98, 0, 1 << 22)]
        for off in range(0, WS_ACT + 2048 * 7168, 64 << 16):
            jobs.append((4, off, WS_BYTES))
        k('s_lshr_b32 s%d, s2, 3' % (sT + 4))
        k('s_lshl_b32 s%d, s%d, 2' % (sT + 4, sT + 4))
        k('s_add_u32 s%d, s%d, s%d' % (sT + 4, sT + 4, sWave))
        k('s_mov_b32 s56, s4')
        k('s_mov_b32 s57, s5')
        k('s_mov_b32 s58, 0')
        k('s_mov_b32 s59, 0x20000')
        k('s_mov_b32 s%d, 0' % (sT + 5))
        for n_, (pr, off, sz) in enumerate(jobs):
            k('s_cmp_eq_u32 s%d, %d' % (sT + 4, 32 + n_))
            k('s_cselect_b32 s56, s%d, s56' % pr)
            k('s_cselect_b32 s57, s%d, s57' % (pr + 1))
            k('s_cselect_b32 s58, 0x%x, s58' % sz)
            k('s_cselect_b32 s%d, 0x%x, s%d' % (sT + 5, off, sT + 5))
        k('v_lshlrev_b32 v%d, 16, v%d' % (vT + 2, vLane))
        k('buffer_load_dword v%d, v%d, s[56:59], s%d offen' % (vT + 31, vT + 2, sT + 5))
        nwarm += 1
    if diag:
        stamp(k, 1)
    srd(k, RU, sWS, 0x400000, WS_U)
    srd(k, RX2, sWS, 16 * 10 * 512, WS_X2)
    srd(k, RM, sWS, 8192, WS_XM)

    A0, ST, C0, C1, S0, S1 = vT + 2, vT + 3, vT + 4, vT + 5, vT + 6, vT + 7
    fN, fQ, fEl = vT + 8, vT + 9, vT + 10
    k('v_cvt_f32_u32 v%d, v%d' % (fN, vN))
    k('v_cvt_f32_u32 v%d, v%d' % (fQ, vQ))
    k('s_lshl_b32 s%d, s%d, 4' % (sT + 4, sHF))
    k('v_add_u32 v%d, s%d, v%d' % (fEl, sT + 4, vN))
    k('v_cvt_f32_u32 v%d, v%d' % (fEl, fEl))
    k('v_mul_f32 v%d, %s, v%d' % (ST, f32hex(1 / 32.), fEl))
    k('v_mul_f32 v%d, v%d, v%d' % (A0, ST, fQ))
    k('v_mul_f32 v%d, %s, v%d' % (A0, f32hex(8.), A0))
    for p in range(4):
        k('v_cos_f32 v%d, v%d' % (C0, A0))
        k('v_sin_f32 v%d, -v%d' % (S0, A0))
        k('v_add_f32 v%d, v%d, v%d' % (A0, A0, ST))
        k('v_cos_f32 v%d, v%d' % (C1, A0))
        k('v_sin_f32 v%d, -v%d' % (S1, A0))
        k('v_add_f32 v%d, v%d, v%d' % (A0, A0, ST))
        k('v_cvt_pk_f16_f32 v%d, v%d, v%d' % (vF2c + p, C0, C1))
        k('v_cvt_pk_f16_f32 v%d, v%d, v%d' % (vF2s + p, S0, S1))
    k('v_mul_f32 v%d, %s, v%d' % (ST, f32hex(1 / 1024.), fEl))
    k('v_mul_f32 v%d, v%d, v%d' % (A0, ST, fQ))
    k('v_mul_f32 v%d, %s, v%d' % (A0, f32hex(8.), A0))
    for d in range(8):
        b, ip = d & 1, d >> 1
        k('v_cos_f32 v%d, v%d' % (vTc + 4 * b + ip, A0))
        k('v_sin_f32 v%d, v%d' % (vTs + 4 * b + ip, A0))
        if d < 7:
            k('v_add_f32 v%d, v%d, v%d' % (A0, A0, ST))
    k('v_mul_f32 v%d, %s, v%d' % (ST, f32hex(1 / 32.), fN))
    k('v_mul_f32 v%d, v%d, v%d' % (vT + 11, ST, fQ))
    k('v_mul_f32 v%d, %s, v%d' % (vT + 11, f32hex(8.), vT + 11))
    k('v_add_f32 v%d, v%d, v%d' % (vT + 12, ST, ST))
    for p in range(4):
        b = p >> 1
        if p == 0:
            k('v_mov_b32 v%d, v%d' % (A0, vT + 11))
        elif p == 2:
            k('v_add_f32 v%d, v%d, v%d' % (A0, vT + 11, ST))
        k('v_cos_f32 v%d, v%d' % (C0, A0))
        k('v_sin_f32 v%d, v%d' % (S0, A0))
        k('v_add_f32 v%d, v%d, v%d' % (A0, A0, vT + 12))
        k('v_cos_f32 v%d, v%d' % (C1, A0))
        k('v_sin_f32 v%d, v%d' % (S1, A0))
        k('v_add_f32 v%d, v%d, v%d' % (A0, A0, vT + 12))
        k('v_cvt_pk_f16_f32 v%d, v%d, v%d' % (vC3 + p, C0, C1))
        k('v_cvt_pk_f16_f32 v%d, v%d, v%d' % (vS3 + p, S0, S1))
        k('v_cvt_pk_f16_f32 v%d, -v%d, -v%d' % (vS3n + p, S0, S1))
    k('v_mul_f32 v%d, %s, v%d' % (ST, f32hex(1 / 16.), fN))
    k('v_mul_f32 v%d, v%d, v%d' % (vT + 11, ST, fQ))
    k('v_add_f32 v%d, v%d, v%d' % (vT + 11, vT + 11, vT + 11))
    for p in range(4):
        mult = 8 * (p >> 1) + (p & 1)
        k('v_mov_b32 v%d, %s' % (vT + 12, f32hex(float(mult))))
        k('v_fma_f32 v%d, v%d, v%d, v%d' % (A0, ST, vT + 12, vT + 11))
        k('v_cos_f32 v%d, v%d' % (C0, A0))
        k('v_sin_f32 v%d, v%d' % (S0, A0))
        k('s_nop 0')
        k('v_cvt_pk_f16_f32 v%d, v%d, v%d' % (vGr + p, C0, S0))
        k('v_cvt_pk_f16_f32 v%d, v%d, -v%d' % (vGi + p, S0, C0))
    if diag:
        stamp(k, 2)
    P = vT + 2
    for jj in range(4):
        k('s_waitcnt vmcnt(%d)' % (8 * (3 - jj) + len(pf) + nwarm))
        for i in range(8):
            e = vE + 16 * jj + 2 * i
            k('v_lshlrev_b32 v%d, 16, v%d' % (e, vX + 8 * jj + i))
            k('v_and_b32 v%d, 0xffff0000, v%d' % (e + 1, vX + 8 * jj + i))
        e = vE + 16 * jj
        p = P + 2 * jj
        k('v_pk_add_f32 %s, %s, %s' % (vr(p, 2), vr(e, 2), vr(e + 2, 2)))
        for i in range(2, 8):
            k('v_pk_add_f32 %s, %s, %s' % (vr(p, 2), vr(p, 2), vr(e + 2 * i, 2)))
    if diag:
        stamp(k, 3)

    def reduce4(chains):
        k('s_nop 1')
        for c in chains:
            k('v_permlane32_swap_b32 v%d, v%d' % (c[0], c[1]))
            k('v_permlane32_swap_b32 v%d, v%d' % (c[2], c[3]))
        for c in chains:
            k('v_add_f32 v%d, v%d, v%d' % (c[0], c[0], c[1]))
            k('v_add_f32 v%d, v%d, v%d' % (c[2], c[2], c[3]))
        k('s_nop 1')
        for c in chains:
            k('v_permlane16_swap_b32 v%d, v%d' % (c[0], c[2]))
        for c in chains:
            k('v_add_f32 v%d, v%d, v%d' % (c[0], c[0], c[2]))
        for mode in ('quad_perm:[1,0,3,2]', 'quad_perm:[2,3,0,1]', 'row_half_mirror', 'row_mirror'):
            k('s_nop 1')
            for c in chains:
                k('v_add_f32_dpp v%d, v%d, v%d %s row_mask:0xf bank_mask:0xf' % (c[0], c[0], c[0], mode))

    reduce4([tuple(P + 2 * jj for jj in range(4)), tuple(P + 2 * jj + 1 for jj in range(4))])
    vMean, vAlt = vT + 10, vT + 11
    k('v_add_f32 v%d, v%d, v%d' % (vMean, P, P + 1))
    k('v_sub_f32 v%d, v%d, v%d' % (vAlt, P, P + 1))
    k('v_mul_f32 v%d, %s, v%d' % (vMean, f32hex(1 / 1024.), vMean))
    LROW = [0, 32, 16, 48]
    k('s_nop 0')
    for jj in range(4):
        k('v_readlane_b32 s%d, v%d, %d' % (sM + jj, vMean, LROW[jj]))
    k('s_nop 1')
    for jj in range(4):
        e = vE + 16 * jj
        k('v_mov_b32 v%d, s%d' % (vT + 12, sM + jj))
        for i in range(8):
            k('v_pk_add_f32 %s, %s, %s op_sel_hi:[1,0] neg_lo:[0,1] neg_hi:[0,1]' % (vr(e + 2 * i, 2), vr(e + 2 * i, 2), vr(vT + 12, 2)))
        p = P + 2 * jj
        k('v_pk_mul_f32 %s, %s, %s' % (vr(p, 2), vr(e, 2), vr(e, 2)))
        for i in range(1, 8):
            k('v_pk_fma_f32 %s, %s, %s, %s' % (vr(p, 2), vr(e + 2 * i, 2), vr(e + 2 * i, 2), vr(p, 2)))
        k('v_add_f32 v%d, v%d, v%d' % (p, p, p + 1))
    reduce4([tuple(P + 2 * jj for jj in range(4))])
    V = P
    k('v_mul_f32 v%d, %s, v%d' % (V, f32hex(1 / 1024.), V))
    k('v_cvt_pk_bf16_f32 v%d, v%d, v%d' % (V, V, V))
    k('v_lshlrev_b32 v%d, 16, v%d' % (V, V))
    k('v_add_f32 v%d, %s, v%d' % (V, f32hex(1e-5), V))
    k('v_cvt_pk_bf16_f32 v%d, v%d, v%d' % (V, V, V))
    k('v_lshlrev_b32 v%d, 16, v%d' % (V, V))
    k('v_sqrt_f32 v%d, v%d' % (V, V))
    k('s_nop 0')
    k('v_cvt_pk_bf16_f32 v%d, v%d, v%d' % (V, V, V))
    k('v_lshlrev_b32 v%d, 16, v%d' % (V, V))
    k('v_rcp_f32 v%d, v%d' % (V, V))
    k('s_nop 0')
    k('v_mul_f32 v%d, v%d, v%d' % (vAlt, vAlt, V))
    k('v_and_b32 v%d, 1, v%d' % (vT + 12, vQ))
    k('v_lshrrev_b32 v%d, 1, v%d' % (vT + 13, vQ))
    k('v_lshl_add_u32 v%d, v%d, 1, v%d' % (vT + 12, vT + 12, vT + 13))
    k('v_lshlrev_b32 v%d, 9, v%d' % (vT + 12, vT + 12))
    k('s_lshr_b32 s%d, s%d, 9' % (sT + 4, sT))
    k('buffer_store_dword v%d, v%d, s[%d:%d], s%d offen' % (vMean, vT + 12, RM, RM + 3, sT + 4))
    for jj in range(4):
        k('v_readlane_b32 s%d, v%d, %d' % (sR + jj, V, LROW[jj]))
        k('v_readlane_b32 s%d, v%d, %d' % (sNq + jj, vAlt, LROW[jj]))
    if diag:
        stamp(k, 4)
    vLW, vLX = vT + 14, vT + 15
    k('v_lshlrev_b32 v%d, 5, v%d' % (vLW, vN))
    k('v_lshl_add_u32 v%d, v%d, 3, v%d' % (vLW, vQ, vLW))
    k('s_mul_i32 s%d, s%d, %d' % (sT + 4, sWave, 8 * ROW))
    k('v_add_u32 v%d, s%d, v%d' % (vLW, sT + 4, vLW))
    k('v_mul_u32_u24 v%d, %d, v%d' % (vLX, ROW, vLane))
    k('v_add_u32 v%d, s%d, v%d' % (vLX, sT + 4, vLX))
    k('v_cmp_eq_u32 vcc, 0, v%d' % vLane)
    for jj in range(4):
        e = vE + 16 * jj
        k('v_mov_b32 v%d, s%d' % (vT + 12, sR + jj))
        for i in range(8):
            k('v_pk_mul_f32 %s, %s, %s op_sel_hi:[1,0]' % (vr(e + 2 * i, 2), vr(e + 2 * i, 2), vr(vT + 12, 2)))
        k('v_cvt_pk_f16_f32 v%d, s%d, v%d' % (vT + 16 + jj, sNq + jj, e))
        a = vX + 8 * jj
        for b in range(2):
            for p in range(4):
                k('v_cvt_pk_f16_f32 v%d, v%d, v%d' % (a + 4 * b + p, e + 4 * p + b, e + 4 * p + 2 + b))
        k('v_cndmask_b32 v%d, 0, v%d, vcc' % (vT + 16 + jj, vT + 16 + jj))
    k('s_mov_b64 exec, 3')
    for jj in range(4):
        k('ds_write_b32 v%d, v%d offset:%d' % (vLX, vT + 16 + jj, 2 * jj * ROW + 512))
    k('s_mov_b64 exec, -1')
    for jj in range(4):
        e = vE + 16 * jj
        a = vX + 8 * jj
        for b in range(2):
            k('v_mfma_f32_16x16x32_f16 %s, %s, %s, 0' % (vr(e + 4 * b, 4), vr(a + 4 * b, 4), vr(vF2c, 4)))
            k('v_mfma_f32_16x16x32_f16 %s, %s, %s, 0' % (vr(e + 8 + 4 * b, 4), vr(a + 4 * b, 4), vr(vF2s, 4)))
    W = vT + 16
    for jj in range(4):
        e = vE + 16 * jj
        a = vX + 8 * jj
        if jj == 3:
            k('s_nop 3')
        for h in range(4):
            re, im, c, s, w = e + 2 * h, e + 8 + 2 * h, vTc + 2 * h, vTs + 2 * h, W + 2 * h
            k('v_pk_mul_f32 %s, %s, %s' % (vr(w, 2), vr(re, 2), vr(c, 2)))
            k('v_pk_fma_f32 %s, %s, %s, %s' % (vr(w, 2), vr(im, 2), vr(s, 2), vr(w, 2)))
            k('v_pk_mul_f32 %s, %s, %s' % (vr(im, 2), vr(im, 2), vr(c, 2)))
            k('v_pk_fma_f32 %s, %s, %s, %s neg_lo:[1,0,0] neg_hi:[1,0,0]' % (vr(im, 2), vr(re, 2), vr(s, 2), vr(im, 2)))
        for h in range(4):
            k('v_cvt_pk_f16_f32 v%d, v%d, v%d' % (a + h, W + 2 * h, W + 2 * h + 1))
            k('v_cvt_pk_f16_f32 v%d, v%d, v%d' % (a + 4 + h, e + 8 + 2 * h, e + 9 + 2 * h))
        k('s_nop 1')
        k('v_mfma_f32_16x16x32_f16 %s, %s, %s, 0' % (vr(e, 4), vr(a, 4), vr(vC3, 4)))
        k('v_mfma_f32_16x16x32_f16 %s, %s, %s, 0' % (vr(e + 4, 4), vr(a + 4, 4), vr(vC3, 4)))
        k('v_mfma_f32_16x16x32_f16 %s, %s, %s, %s' % (vr(e, 4), vr(a + 4, 4), vr(vS3, 4), vr(e, 4)))
        k('v_mfma_f32_16x16x32_f16 %s, %s, %s, %s' % (vr(e + 4, 4), vr(a, 4), vr(vS3n, 4), vr(e + 4, 4)))
    for jj in range(4):
        e = vE + 16 * jj
        if jj == 3:
            k('s_nop 3')
        for part in range(2):
            k('v_cvt_pk_f16_f32 v%d, v%d, v%d' % (e + 8 + 2 * part, e + 4 * part, e + 4 * part + 1))
            k('v_cvt_pk_f16_f32 v%d, v%d, v%d' % (e + 9 + 2 * part, e + 4 * part + 2, e + 4 * part + 3))
            k('ds_write_b64 v%d, %s offset:%d' % (vLW, vr(e + 8 + 2 * part, 2), (2 * jj + part) * ROW))
    if diag:
        stamp(k, 5)
    vRA = vT + 2
    k('v_lshrrev_b32 v%d, 2, v%d' % (vRA, vLane))
    k('v_mul_u32_u24 v%d, %d, v%d' % (vRA, ROW, vRA))
    k('v_and_b32 v%d, 3, v%d' % (vT + 3, vLane))
    k('v_lshl_add_u32 v%d, v%d, 3, v%d' % (vRA, vT + 3, vRA))
    k('s_lshl_b32 s%d, s%d, 7' % (sT + 4, sWave))
    k('v_add_u32 v%d, s%d, v%d' % (vT + 4, sT + 4, vRA))
    vUA, vXA = vT + 5, vT + 6
    k('v_and_b32 v%d, 1, v%d' % (vT + 7, vQ))
    k('v_lshrrev_b32 v%d, 1, v%d' % (vT + 8, vQ))
    k('v_lshl_add_u32 v%d, v%d, 1, v%d' % (vT + 7, vT + 7, vT + 8))
    k('v_lshlrev_b32 v%d, 18, v%d' % (vUA, vN))
    k('v_lshl_add_u32 v%d, v%d, 4, v%d' % (vUA, vT + 7, vUA))
    k('s_lshl_b32 s%d, s%d, 16' % (sT + 4, sWave))
    k('s_lshl_b32 s%d, s%d, 7' % (sT + 5, sG))
    k('s_add_u32 s%d, s%d, s%d' % (sT + 4, sT + 4, sT + 5))
    k('s_lshl_b32 s%d, s%d, 6' % (sT + 5, sHF))
    k('s_add_u32 s%d, s%d, s%d' % (sT + 4, sT + 4, sT + 5))
    k('s_add_u32 s%d, s%d, 0x4000' % (sT + 5, sT + 4))
    k('s_add_u32 s%d, s%d, 0x8000' % (sT + 6, sT + 4))
    k('s_add_u32 s%d, s%d, 0xc000' % (sT + 7, sT + 4))
    k('v_mul_u32_u24 v%d, 5120, v%d' % (vXA, vN))
    sX = 52
    k('s_lshl_b32 s%d, s%d, 10' % (sX, sWave))
    k('s_lshl_b32 s%d, s%d, 1' % (sX + 1, sG))
    k('s_add_u32 s%d, s%d, s%d' % (sX, sX, sX + 1))
    k('s_waitcnt lgkmcnt(0)')
    k('s_barrier')
    FA = vX
    for blk in range(4):
        for hh in range(2):
            k('ds_read_b64_tr_b16 %s, v%d offset:%d' % (vr(FA + 4 * blk + 2 * hh, 2), vT + 4, 32 * blk + 16 * hh * ROW))
    for hh in range(2):
        k('ds_read_b64_tr_b16 %s, v%d offset:%d' % (vr(FA + 16 + 2 * hh, 2), vRA, 512 + 16 * hh * ROW))
    Dd = vE
    for blk in range(5):
        k('s_waitcnt lgkmcnt(%d)' % (2 * (4 - blk)))
        k('v_mfma_f32_16x16x32_f16 %s, %s, %s, 0' % (vr(Dd + 8 * blk, 4), vr(FA + 4 * blk, 4), vr(vGr, 4)))
        k('v_mfma_f32_16x16x32_f16 %s, %s, %s, 0' % (vr(Dd + 8 * blk + 4, 4), vr(FA + 4 * blk, 4), vr(vGi, 4)))
    k('s_nop 1')
    O = vE + 40
    for pair in range(2):
        if pair == 1:
            pass
        for part in range(2):
            o = O + (pair * 2 + part) * 4
            for u in range(2):
                d = Dd + 8 * (2 * pair + u) + 4 * part
                k('v_cvt_pk_f16_f32 v%d, v%d, v%d' % (o + 2 * u, d, d + 1))
                k('v_cvt_pk_f16_f32 v%d, v%d, v%d' % (o + 2 * u + 1, d + 2, d + 3))
    for part in range(2):
        k('v_cvt_pk_f16_f32 v%d, v%d, v%d' % (O + 16 + part, Dd + 32 + 4 * part, Dd + 33 + 4 * part))
    for pair in range(2):
        for part in range(2):
            o = O + (pair * 2 + part) * 4
            k('v_permlane16_swap_b32 v%d, v%d' % (o, o + 2))
            k('v_permlane16_swap_b32 v%d, v%d' % (o + 1, o + 3))
            k('buffer_store_dwordx4 %s, v%d, s[%d:%d], s%d offen' % (vr(o, 4), vUA, RU, RU + 3, sT + 4 + 2 * pair + part))
    fin = k.newlabel('fin')
    k('s_cmp_lg_u32 s%d, 0' % sHF)
    k('s_cbranch_scc1 %s' % fin)
    k('s_mov_b64 exec, 0xffff')
    for pair in range(2):
        for part in range(2):
            o = O + (pair * 2 + part) * 4
            k('buffer_store_short v%d, v%d, s[%d:%d], s%d offen offset:%d' % (o, vXA, RX2, RX2 + 3, sX, 512 * pair + 256 * part))
    k('s_cmp_lg_u32 s%d, 0' % sWave)
    k('s_cbranch_scc1 %s' % fin)
    k('s_add_u32 s%d, s%d, 0x1000' % (sX + 1, sX))
    for part in range(2):
        k('buffer_store_short v%d, v%d, s[%d:%d], s%d offen offset:%d' % (O + 16 + part, vXA, RX2, RX2 + 3, sX + 1, 256 * part))
        k('buffer_store_short_d16_hi v%d, v%d, s[%d:%d], s%d offen offset:%d' % (O + 16 + part, vXA, RX2, RX2 + 3, sX + 1, 512 + 256 * part))
    k.label(fin)
    k('s_mov_b64 exec, -1')
    if diag:
        stamp_flush(k, kidx, 7, sWS, 56, 2, 0)
    if pfe:
        prefetch_w(k, pfe, sWave, vLane, dict(wg=92, wu=94, wd=96), 60, sT + 4, vT + 2, vT + 31)
    k.label(done)
    k('s_endpgm')
    return dict(name=name, text=k.text(NV, NV), grid=256, block=256, lds=LDS, nst=7)
```

```python
from asmlib import *
from build import build
from ka import gen_ka
from kb import gen_kb
import kc, kc2, kd, kd2
B = gen_kb(pf=['gu8']); C = kc2.gen_kc(lead=6, S0=8, pf1=27); D = kd2.gen_kd(PD=2, lead=2)
open('e1.s','w').write(build([gen_ka(),B,C,D]))
open('e2.s','w').write(build([gen_ka(warm='c'),B,C,D]))
open('e3.s','w').write(build([gen_ka(warm='t'),B,C,D]))
open('e4.s','w').write(build([gen_ka(warm='ct'),B,C,D]))
```

```python
WS_U = 0x0000000
WS_HC = 0x1000000
WS_H = 0x1400000
WS_SS = 0x1800000
WS_XM = 0x1840000
WS_MU = 0x1850000
WS_ACT = 0x2000000
WS_WD = 0x3000000
WS_STAMP = 0xF000000
WS_BYTES = 0x10000000

KARG = dict(x=0, cs=8, ss=16, cd=24, sd=32, bx=40, wg=48, wu=56, wd=64, out=72, dbg=80, ws=88)


class K:
    def __init__(self, name):
        self.name = name
        self.lines = []
        self.nlabel = 0

    def __call__(self, s, *a):
        for ln in s.split('\n'):
            ln = ln.strip()
            if ln:
                self.lines.append('    ' + ln)

    def c(self, s):
        self.lines.append('    ; ' + s)

    def label(self, l):
        self.lines.append(l + ':')

    def newlabel(self, base):
        self.nlabel += 1
        return 'L_%s_%s_%d' % (self.name, base, self.nlabel)

    def nop(self, n):
        while n > 0:
            k = min(n, 16)
            self('s_nop %d' % (k - 1))
            n -= k

    def text(self, nvgpr, accum_offset, nsgpr=102):
        fixed = []
        for i, l in enumerate(self.lines):
            if 'v_mfma' in l and fixed and fixed[-1].strip().startswith('v_pk_'):
                fixed.append('    s_nop 0')
            fixed.append(l)
        self.lines = fixed
        hdr = ['.text', '.globl %s' % self.name, '.p2align 8', '.type %s,@function' % self.name, '%s:' % self.name]
        kd = ['.section .rodata,"a"', '.p2align 6', '.amdhsa_kernel %s' % self.name,
              '  .amdhsa_next_free_vgpr %d' % nvgpr,
              '  .amdhsa_next_free_sgpr %d' % nsgpr,
              '  .amdhsa_accum_offset %d' % accum_offset,
              '  .amdhsa_group_segment_fixed_size 0',
              '  .amdhsa_kernarg_size 96',
              '  .amdhsa_user_sgpr_count 2',
              '  .amdhsa_user_sgpr_kernarg_segment_ptr 1',
              '  .amdhsa_system_sgpr_workgroup_id_x 1',
              '  .amdhsa_float_denorm_mode_32 3',
              '  .amdhsa_float_denorm_mode_16_64 3',
              '.end_amdhsa_kernel']
        return '\n'.join(hdr + self.lines + kd) + '\n'


def vr(b, n=1):
    return 'v%d' % b if n == 1 else 'v[%d:%d]' % (b, b + n - 1)


def ar(b, n=1):
    return 'a%d' % b if n == 1 else 'a[%d:%d]' % (b, b + n - 1)


def sr(b, n=1):
    return 's%d' % b if n == 1 else 's[%d:%d]' % (b, b + n - 1)


def interleave(main, side, start=0, end=None):
    n = len(main)
    if end is None:
        end = n
    span = end - start
    out = []
    slots = [[] for _ in range(n)]
    m = len(side)
    for k, g in enumerate(side):
        pos = start + (k * span) // m if m else 0
        slots[min(pos, n - 1)].append(g)
    for i in range(n):
        out.append(main[i])
        for g in slots[i]:
            out.extend(g)
    return out


def srd(k, d, base, nbytes, off=0):
    if off:
        k('s_add_u32 s%d, s%d, 0x%x' % (d, base, off))
        k('s_addc_u32 s%d, s%d, 0' % (d + 1, base + 1))
    else:
        k('s_mov_b32 s%d, s%d' % (d, base))
        k('s_mov_b32 s%d, s%d' % (d + 1, base + 1))
    k('s_mov_b32 s%d, 0x%x' % (d + 2, nbytes))
    k('s_mov_b32 s%d, 0x20000' % (d + 3))


SB = 64


def stamp(k, i):
    if i == 0:
        k('s_memrealtime s[%d:%d]' % (SB, SB + 1))
    k('s_memtime s[%d:%d]' % (SB + 4 + 2 * i, SB + 5 + 2 * i))


def stamp_flush(k, kidx, n, s_ws, s_tmp, s_wg, vt, s_wave=None):
    t = s_tmp
    k('s_memrealtime s[%d:%d]' % (SB + 2, SB + 3))
    stamp(k, n - 1)
    srd(k, t, s_ws, 0x100000, WS_STAMP)
    k('s_lshl_b32 s%d, s%d, 7' % (t + 4, s_wg))
    k('s_add_u32 s%d, s%d, %d' % (t + 4, t + 4, kidx * 512 * 128))
    k('s_waitcnt lgkmcnt(0)')
    k('v_mov_b32 v%d, s%d' % (vt + 4, t + 4))
    k('s_getreg_b32 s%d, hwreg(HW_REG_XCC_ID)' % (t + 4))
    k('v_mov_b32 v%d, s%d' % (vt, t + 4))
    k('s_getreg_b32 s%d, hwreg(HW_REG_HW_ID)' % (t + 4))
    k('v_mov_b32 v%d, s%d' % (vt + 1, t + 4))
    k('buffer_store_dwordx2 v[%d:%d], v%d, s[%d:%d], 0 offen offset:120' % (vt, vt + 1, vt + 4, t, t + 3))
    k('s_nop 1')
    for q in range((4 + 2 * n + 3) // 4):
        for i in range(4):
            k('v_mov_b32 v%d, s%d' % (vt + i, SB + 4 * q + i))
        k('buffer_store_dwordx4 v[%d:%d], v%d, s[%d:%d], 0 offen offset:%d' % (vt, vt + 3, vt + 4, t, t + 3, 16 * q))
        k('s_nop 1')


def prefetch_w(k, jobs, s_wave, v_lane, sp, R, st, vt, vdst):
    k('v_min_u32 v%d, %d, v%d' % (vt, 27 if jobs == ['gu8'] else 55, v_lane))
    for job in jobs:
        if job in ('wg', 'wu'):
            k('v_mul_u32_u24 v%d, 9363, v%d' % (vt + 1, vt))
            k('v_lshrrev_b32 v%d, 16, v%d' % (vt + 1, vt + 1))
            k('v_mul_u32_u24 v%d, 7, v%d' % (vt + 2, vt + 1))
            k('v_sub_u32 v%d, v%d, v%d' % (vt + 2, vt, vt + 2))
            k('v_mul_u32_u24 v%d, 7168, v%d' % (vt + 1, vt + 1))
            k('v_lshl_add_u32 v%d, v%d, 7, v%d' % (vt + 1, vt + 2, vt + 1))
            k('s_lshr_b32 s%d, s2, 3' % st)
            k('s_lshl_b32 s%d, s%d, 2' % (st, st))
            k('s_add_u32 s%d, s%d, s%d' % (st, st, s_wave))
            k('s_mul_i32 s%d, s%d, %d' % (st, st, 8 * 7168))
            k('s_and_b32 s%d, s2, 7' % (st + 1))
            k('s_mul_i32 s%d, s%d, 896' % (st + 1, st + 1))
            k('s_add_u32 s%d, s%d, s%d' % (st, st, st + 1))
        elif job in ('gu8', 'gu16', 'gu8b'):
            k('v_mul_u32_u24 v%d, 9363, v%d' % (vt + 1, vt))
            k('v_lshrrev_b32 v%d, 16, v%d' % (vt + 1, vt + 1))
            k('v_mul_u32_u24 v%d, 7, v%d' % (vt + 2, vt + 1))
            k('v_sub_u32 v%d, v%d, v%d' % (vt + 2, vt, vt + 2))
            k('v_mul_u32_u24 v%d, 7168, v%d' % (vt + 1, vt + 1))
            k('v_lshl_add_u32 v%d, v%d, 7, v%d' % (vt + 1, vt + 2, vt + 1))
            k('s_lshr_b32 s%d, s2, 3' % st)
            if job == 'gu16':
                k('s_lshr_b32 s%d, s%d, 1' % (st + 1, s_wave))
                k('s_lshl_b32 s%d, s%d, 5' % (st + 1, st + 1))
                k('s_add_u32 s%d, s%d, s%d' % (st, st, st + 1))
            if job == 'gu8b':
                k('s_add_u32 s%d, s%d, 32' % (st, st))
            k('s_mul_i32 s%d, s%d, %d' % (st, st, 8 * 7168))
            if jobs == ['gu8']:
                k('s_lshr_b32 s%d, s%d, 1' % (st + 1, s_wave))
                k('s_mul_i32 s%d, s%d, %d' % (st + 1, st + 1, 4 * 7168))
                k('s_add_u32 s%d, s%d, s%d' % (st, st, st + 1))
            k('s_and_b32 s%d, s2, 7' % (st + 1))
            k('s_mul_i32 s%d, s%d, 896' % (st + 1, st + 1))
            k('s_add_u32 s%d, s%d, s%d' % (st, st, st + 1))
            k('s_bitcmp0_b32 s%d, 0' % s_wave)
            k('s_cselect_b32 s%d, s%d, s%d' % (R, sp['wg'], sp['wu']))
            k('s_cselect_b32 s%d, s%d, s%d' % (R + 1, sp['wg'] + 1, sp['wu'] + 1))
            k('s_mov_b32 s%d, 0x%x' % (R + 2, 1024 * 7168))
            k('s_mov_b32 s%d, 0x20000' % (R + 3))
            k('buffer_load_dword v%d, v%d, s[%d:%d], s%d offen' % (vdst, vt + 1, R, R + 3, st))
            continue
        else:
            k('v_lshlrev_b32 v%d, 7, v%d' % (vt + 1, vt))
            k('s_lshl_b32 s%d, s2, 2' % st)
            k('s_add_u32 s%d, s%d, s%d' % (st, st, s_wave))
            k('s_mul_i32 s%d, s%d, 7168' % (st, st))
        srd(k, R, sp[job], 1024 * 7168)
        k('buffer_load_dword v%d, v%d, s[%d:%d], s%d offen' % (vdst, vt + 1, R, R + 3, st))


def order_table(k, N, S0, L, ndes, sC, sT, vLane, vT, vTab):
    pat = ((1 << ndes) - 1) * 0x01010101
    k('s_mov_b32 s%d, 0x%x' % (sT, pat))
    k('s_mov_b32 s%d, 0x%x' % (sT + 1, pat))
    k('s_lshl_b64 s[%d:%d], s[%d:%d], s%d' % (sT, sT + 1, sT, sT + 1, sC))
    k('s_and_b32 s%d, s%d, 0x%x' % (sT + 1, sT + 1, (((1 << N) - 1) & ~((1 << S0) - 1)) & 0xffffffff))
    k('v_mov_b32 v%d, s%d' % (vT + 1, sT + 1))
    k('v_lshrrev_b32 v%d, v%d, v%d' % (vT, vLane, vT + 1))
    k('v_and_b32 v%d, 1, v%d' % (vT, vT))
    k('v_cmp_eq_u32 vcc, 1, v%d' % vT)
    k('v_subrev_u32 v%d, %d, v%d' % (vT + 2, L, vLane))
    k('v_max_i32 v%d, 0, v%d' % (vT + 2, vT + 2))
    k('v_add_u32 v%d, %d, v%d' % (vT + 3, L + 1, vLane))
    k('v_min_u32 v%d, %d, v%d' % (vT + 3, N, vT + 3))
    k('v_cndmask_b32 v%d, v%d, v%d, vcc' % (vT + 2, vLane, vT + 2))
    k('v_cndmask_b32 v%d, v%d, v%d, vcc' % (vT + 3, vT + 3, vLane))
    k('v_bfm_b32 v%d, v%d, 0' % (vT + 4, vT + 2))
    k('v_and_b32 v%d, v%d, v%d' % (vT + 4, vT + 4, vT + 1))
    k('v_bcnt_u32_b32 v%d, v%d, 0' % (vT + 4, vT + 4))
    k('v_sub_u32 v%d, v%d, v%d' % (vT + 2, vT + 2, vT + 4))
    k('v_bcnt_u32_b32 v%d, v%d, v%d' % (vT + 2, vT + 1, vT + 2))
    k('v_lshrrev_b32 v%d, 1, v%d' % (vT + 4, vT + 3))
    k('v_sub_u32 v%d, v%d, v%d' % (vT + 3, vT + 3, vT + 4))
    k('v_lshrrev_b32 v%d, v%d, v%d' % (vT + 4, vT + 4, vT + 1))
    k('v_lshrrev_b32 v%d, v%d, v%d' % (vT + 4, vT + 3, vT + 4))
    k('v_bcnt_u32_b32 v%d, v%d, 0' % (vT + 4, vT + 4))
    k('v_cmp_gt_u32 vcc, %d, v%d' % (N, vLane))
    k('v_sub_u32 v%d, v%d, v%d' % (vT + 2, vT + 2, vT + 4))
    k('s_nop 0')
    k('v_cndmask_b32 v%d, v%d, v%d, vcc' % (vT + 2, vLane, vT + 2))
    k('v_lshlrev_b32 v%d, 2, v%d' % (vT + 2, vT + 2))
    k('ds_permute_b32 v%d, v%d, v%d' % (vTab, vT + 2, vLane))


def code_touch_setup(k, R, s_wave, v_lane, st, vaddr):
    lab = k.newlabel('pc')
    k('s_getpc_b64 s[%d:%d]' % (R, R + 1))
    k.label(lab)
    k('s_sub_u32 s%d, s%d, %s-ka_kernel' % (R, R, lab))
    k('s_subb_u32 s%d, s%d, 0' % (R + 1, R + 1))
    k('s_mov_b32 s%d, L_code_end-ka_kernel' % (R + 2))
    k('s_mov_b32 s%d, 0x20000' % (R + 3))
    k('s_lshr_b32 s%d, s2, 3' % st)
    k('s_lshl_b32 s%d, s%d, 2' % (st, st))
    k('s_add_u32 s%d, s%d, s%d' % (st, st, s_wave))
    k('s_lshl_b32 s%d, s%d, 9' % (st, st))
    k('v_lshrrev_b32 v%d, 2, v%d' % (vaddr, v_lane))
    k('v_lshlrev_b32 v%d, 13, v%d' % (vaddr, vaddr))
    k('v_add_u32 v%d, v%d, v%d' % (vaddr, vaddr, v_lane))
    k('v_lshlrev_b32 v%d, 7, v%d' % (vaddr, vaddr))
    k('v_add_u32 v%d, s%d, v%d' % (vaddr, st, vaddr))


def code_touch(R, vaddr, vdst):
    return 'buffer_load_dword v%d, v%d, s[%d:%d], 0 offen' % (vdst, vaddr, R, R + 3)


def unpack_pk(text, only_mod=False):
    import re
    out = []
    for l in text.split('\n'):
        m = re.match(r'\s*v_pk_(add|mul|fma)_f32 (.*)', l)
        if not m or (only_mod and not re.search(r'op_sel|neg_', l)):
            out.append(l)
            continue
        op, rest = m.groups()
        regs = [int(x) for x in re.findall(r'v\[(\d+):\d+\]', rest)]
        ns = len(regs) - 1

        def mod(name, default):
            mm = re.search(name + r':\[([\d,]+)\]', rest)
            return [int(x) for x in mm.group(1).split(',')] if mm else [default] * ns
        sel = [mod(r'op_sel', 0), mod('op_sel_hi', 1)]
        if not re.search(r'op_sel:\[', rest):
            sel[0] = [0] * ns
        else:
            sel[0] = [int(x) for x in re.search(r'op_sel:\[([\d,]+)\]', rest).group(1).split(',')]
        neg = [mod('neg_lo', 0), mod('neg_hi', 0)]
        srcs = [[regs[1 + i] + sel[h][i] for i in range(ns)] for h in range(2)]
        assert regs[0] not in srcs[1], l
        for h in range(2):
            s = ['%sv%d' % ('-' if neg[h][i] else '', srcs[h][i]) for i in range(ns)]
            if op == 'add' and neg[h] == [0, 1]:
                out.append('    v_sub_f32 v%d, v%d, v%d' % (regs[0] + h, srcs[h][0], srcs[h][1]))
            elif op == 'fma' and srcs[h][2] == regs[0] + h and not any(neg[h]):
                out.append('    v_fmac_f32 v%d, %s, %s' % (regs[0] + h, s[0], s[1]))
            else:
                out.append('    v_%s_f32 v%d, %s' % (op, regs[0] + h, ', '.join(s)))
    return '\n'.join(out)
```

```python
import sys, json
from ka3 import gen_ka
from kb4 import gen_kb
import kc2, kc3
def gen_kc(v=3, **kw):
    return (kc3 if v == 3 else kc2).gen_kc(**kw)
from kd2 import gen_kd
from build import build
from asmlib import unpack_pk
def make(diag=False, kc=None, kd=None, ka=None, kb=None, st=None, small='', nopk=(1, 1)):
    ks = [gen_ka(diag=diag, **(ka or {})), gen_kb(diag=diag, **(kb or {})), gen_kc(diag=diag, **(kc or {})), gen_kd(diag=diag, **(kd or {}))]
    for kk, fl in zip(ks, st or ['', '', '', '']):
        if fl:
            kk['text'] = '\n'.join((l + ' ' + fl) if ('buffer_store_' in l and 's[48:51]' not in l.replace('RH','') and 's[56:59]' not in l) or (kk['name'] == 'kb_kernel' and 'buffer_store_' in l and 's[56:59]' not in l) else l for l in kk['text'].split('\n'))
    for kk, m_ in zip(ks, nopk):
        if m_:
            kk['text'] = unpack_pk(kk['text'], only_mod=(m_ == 2))
    if small:
        for kk in ks[:2]:
            kk['text'] = '\n'.join((l + ' ' + small) if ('buffer_store_dword ' in l) else l for l in kk['text'].split('\n'))
    t = build(ks)
    if diag:
        t = '; nst=' + json.dumps([k.get('nst') for k in ks]) + '\n' + t
    return t
BEST = dict(kc=dict(lead=6, S0=8, pf1=0, pfx=(27, 29), ct=(2, 10, 18, 26), order='snake', rd_end=0.9, place='excl', v=2, overlap=False), kd=dict(PD=2, lead=2, korder='xrot'), kb=dict(pf=['gu8'], stflag='sc1'), ka=dict(stflag='sc1'))

def var(**kw):
    import copy
    c = copy.deepcopy(BEST)
    for k_, v in kw.items():
        c[k_].update(v)
    return c

if __name__ == '__main__':
    V = {
     'v_a': var(),
    }
    for n, o in V.items():
        open(n + '.s', 'w').write(make(True, **o))
        open(n.replace('v_', 'o_') + '.s', 'w').write(make(False, **o))
```

```python
from asmlib import *
from kc import f32hex

WS_X2 = WS_U + 0x400000


def gen_ka(diag=False, kidx=0, name='ka_kernel', warm='c', stflag='', xl=False):
    k = K(name)
    ROW = 544
    TL = 32 * ROW
    CL = TL + 8 * 2048
    XL = CL + 11 * 1024
    LDS = XL + (32768 if xl else 0)
    sWS, sWave, sG, sHF = 4, 28, 29, 30
    sT = 32
    sA = 40
    sU = 44
    sX = 46
    RX, RU, RX2, RM = 12, 16, 20, 24
    vX = 0
    vE = 16
    vF2c, vF2s, vC3, vS3, vS3n, vGr, vGi = 48, 52, 56, 60, 64, 68, 72
    vTc, vTs = 76, 84
    vLane, vN, vQ = 92, 93, 94
    vLW, vLX, vRA, vRB, vUA, vXA = 96, 97, 98, 99, 100, 101
    vT = 102
    NV = 128

    done = k.newlabel('done')
    k('s_cmp_ge_u32 s2, 256')
    k('s_cbranch_scc1 %s' % done)
    if diag:
        stamp(k, 0)
    k('s_load_dwordx2 s[8:9], s[0:1], %d' % KARG['x'])
    k('s_load_dwordx2 s[4:5], s[0:1], %d' % KARG['ws'])
    k('v_and_b32 v%d, 63, v0' % vLane)
    k('v_lshrrev_b32 v%d, 6, v0' % vT)
    k('v_and_b32 v%d, 15, v0' % vN)
    k('v_readfirstlane_b32 s%d, v%d' % (sWave, vT))
    k('v_lshrrev_b32 v%d, 4, v%d' % (vQ, vLane))
    nwarm = 0
    if 'c' in warm:
        k('s_getpc_b64 s[60:61]')
        k.label('L_ka_pc')
        k('s_sub_u32 s60, s60, L_ka_pc-ka_kernel')
        k('s_subb_u32 s61, s61, 0')
        k('s_mov_b32 s62, L_code_end-ka_kernel')
        k('s_mov_b32 s63, 0x20000')
        k('s_lshr_b32 s%d, s2, 3' % (sT + 4))
        k('s_lshl_b32 s%d, s%d, 3' % (sT + 4, sT + 4))
        k('s_add_u32 s%d, s%d, s%d' % (sT + 4, sT + 4, sWave))
        k('s_lshl_b32 s%d, s%d, 8' % (sT + 4, sT + 4))
        k('v_lshrrev_b32 v%d, 1, v%d' % (vT + 1, vLane))
        k('v_lshl_add_u32 v%d, v%d, 13, v%d' % (vT + 1, vT + 1, vLane))
        k('v_lshlrev_b32 v%d, 7, v%d' % (vT + 1, vT + 1))
        k('buffer_load_dword v%d, v%d, s[60:63], s%d offen' % (vT + 25, vT + 1, sT + 4))
        nwarm += 0
    k('s_and_b32 s%d, s2, 7' % sT)
    k('s_lshr_b32 s%d, s2, 4' % (sT + 1))
    k('s_lshl_b32 s%d, s%d, 3' % (sT + 1, sT + 1))
    k('s_add_u32 s%d, s%d, s%d' % (sG, sT, sT + 1))
    k('s_bfe_u32 s%d, s2, 0x10003' % sHF)
    k('v_lshlrev_b32 v%d, 2, v%d' % (vT, vN))
    k('v_lshl_add_u32 v%d, v%d, 9, v%d' % (vT, vQ, vT))
    k('s_lshl_b32 s%d, s%d, 8' % (sT, sWave))
    k('s_add_u32 s%d, s%d, s%d' % (sT, sT, sG))
    k('s_lshl_b32 s%d, s%d, 11' % (sT, sT))
    k('s_add_u32 s%d, s%d, 0x%x' % (sT + 1, sT, 128 * 2048))

    A0, ST, C0, C1, S0, S1 = vT + 2, vT + 3, vT + 4, vT + 5, vT + 6, vT + 7
    fN, fQ, fEl = vT + 8, vT + 9, vT + 10
    k('v_cvt_f32_u32 v%d, v%d' % (fN, vN))
    k('v_cvt_f32_u32 v%d, v%d' % (fQ, vQ))
    k('s_lshl_b32 s%d, s%d, 4' % (sT + 4, sHF))
    k('v_add_u32 v%d, s%d, v%d' % (fEl, sT + 4, vN))
    k('v_cvt_f32_u32 v%d, v%d' % (fEl, fEl))
    k('s_waitcnt lgkmcnt(0)')
    srd(k, RX, 8, 2048 * 2048)
    if xl:
        k('s_lshl_b32 s%d, s%d, 12' % (sT + 4, sWave))
        k('s_add_u32 s%d, s%d, %d' % (sT + 4, sT + 4, XL))
        k('v_lshlrev_b32 v%d, 4, v%d' % (vT + 1, vLane))
        for jj in range(2):
            k('s_add_u32 m0, s%d, %d' % (sT + 4, 2048 * jj))
            k('s_nop 0')
            for h in range(2):
                k('buffer_load_dwordx4 v%d, s[%d:%d], s%d offen offset:%d lds' % (vT + 1, RX, RX + 3, sT + jj, 1024 * h))
        k('v_add_u32 v%d, s%d, v%d' % (vT + 20, sT + 4, vT))
    else:
        for jj in range(2):
            for i in range(8):
                k('buffer_load_dword v%d, v%d, s[%d:%d], s%d offen offset:%d' % (vX + 8 * jj + i, vT, RX, RX + 3, sT + jj, 64 * i))
    if diag:
        stamp(k, 1)
    srd(k, RU, sWS, 0x400000, WS_U)
    srd(k, RX2, sWS, 16 * 10 * 512, WS_X2)
    srd(k, RM, sWS, 8192, WS_XM)
    vCA = vT + 21
    k('v_lshlrev_b32 v%d, 4, v%d' % (vCA, vLane))
    k('v_add_u32 v%d, %d, v%d' % (vCA, CL, vCA))
    Cc = [vF2c + i for i in range(4)]
    Ss = [vF2s + i for i in range(4)]
    Pk = vC3
    cend = k.newlabel('cend')
    labs = [k.newlabel('cj') for _ in range(7)]
    for j in range(1, 7):
        k('s_cmp_eq_u32 s%d, %d' % (sWave, j))
        k('s_cbranch_scc1 %s' % labs[j])
    k('s_cmp_eq_u32 s%d, 7' % sWave)
    k('s_cbranch_scc1 %s' % cend)

    def angles(u, scale, qmul, offs):
        k('v_mul_f32 v%d, %s, v%d' % (ST, f32hex(scale), u))
        k('v_mul_f32 v%d, %s, v%d' % (A0, f32hex(float(qmul)), fQ))
        for i, o in enumerate(offs):
            k('v_add_f32 v%d, %s, v%d' % (C0, f32hex(float(o)), A0))
            k('v_mul_f32 v%d, v%d, v%d' % (C0, C0, ST))
            k('v_cos_f32 v%d, v%d' % (Cc[i], C0))
            k('v_sin_f32 v%d, v%d' % (Ss[i], C0))
        k('s_nop 0')

    for j in range(7):
        k.label(labs[j])
        if j < 2:
            angles(fEl, 1 / 32., 8, [4 * j + i for i in range(4)])
            for h in range(2):
                k('v_cvt_pk_f16_f32 v%d, v%d, v%d' % (Pk + h, Cc[2 * h], Cc[2 * h + 1]))
                k('v_cvt_pk_f16_f32 v%d, -v%d, -v%d' % (Pk + 2 + h, Ss[2 * h], Ss[2 * h + 1]))
            k('ds_write_b64 v%d, %s offset:%d' % (vCA, vr(Pk, 2), 8 * j))
            k('ds_write_b64 v%d, %s offset:%d' % (vCA, vr(Pk + 2, 2), 1024 + 8 * j))
        elif j < 4:
            b = j - 2
            angles(fEl, 1 / 1024., 8, [b + 2 * i for i in range(4)])
            k('ds_write_b128 v%d, %s offset:%d' % (vCA, vr(Cc[0], 4), (7 + b) * 1024))
            k('ds_write_b128 v%d, %s offset:%d' % (vCA, vr(Ss[0], 4), (9 + b) * 1024))
        elif j < 6:
            b = j - 4
            angles(fN, 1 / 32., 8, [b + 2 * i for i in range(4)])
            for h in range(2):
                k('v_cvt_pk_f16_f32 v%d, v%d, v%d' % (Pk + h, Cc[2 * h], Cc[2 * h + 1]))
                k('v_cvt_pk_f16_f32 v%d, v%d, v%d' % (Pk + 2 + h, Ss[2 * h], Ss[2 * h + 1]))
                k('v_cvt_pk_f16_f32 v%d, -v%d, -v%d' % (Pk + 4 + h, Ss[2 * h], Ss[2 * h + 1]))
            for q in range(3):
                k('ds_write_b64 v%d, %s offset:%d' % (vCA, vr(Pk + 2 * q, 2), (2 + q) * 1024 + 8 * b))
        else:
            angles(fN, 1 / 16., 2, [0, 1, 8, 9])
            for i in range(4):
                k('v_cvt_pk_f16_f32 v%d, v%d, v%d' % (Pk + i, Cc[i], Ss[i]))
                k('v_cvt_pk_f16_f32 v%d, v%d, -v%d' % (Pk + 4 + i, Ss[i], Cc[i]))
            k('ds_write_b128 v%d, %s offset:%d' % (vCA, vr(Pk, 4), 5 * 1024))
            k('ds_write_b128 v%d, %s offset:%d' % (vCA, vr(Pk + 4, 4), 6 * 1024))
        if j < 6:
            k('s_branch %s' % cend)
    k.label(cend)
    k('v_lshlrev_b32 v%d, 5, v%d' % (vLW, vN))
    k('v_lshl_add_u32 v%d, v%d, 3, v%d' % (vLW, vQ, vLW))
    k('s_mul_i32 s%d, s%d, %d' % (sT + 4, sWave, 4 * ROW))
    k('v_add_u32 v%d, s%d, v%d' % (vLW, sT + 4, vLW))
    k('v_mul_u32_u24 v%d, %d, v%d' % (vLX, ROW, vLane))
    k('v_add_u32 v%d, s%d, v%d' % (vLX, sT + 4, vLX))
    k('v_lshrrev_b32 v%d, 2, v%d' % (vRA, vLane))
    k('v_mul_u32_u24 v%d, %d, v%d' % (vRA, ROW, vRA))
    k('v_and_b32 v%d, 3, v%d' % (vT + 3, vLane))
    k('v_lshl_add_u32 v%d, v%d, 3, v%d' % (vRA, vT + 3, vRA))
    k('s_lshl_b32 s%d, s%d, 6' % (sT + 4, sWave))
    k('v_add_u32 v%d, s%d, v%d' % (vRB, sT + 4, vRA))
    vTW, vTR = vT + 22, vT + 23
    k('v_and_b32 v%d, 1, v%d' % (vT + 7, vQ))
    k('v_lshrrev_b32 v%d, 1, v%d' % (vT + 8, vQ))
    k('v_lshl_add_u32 v%d, v%d, 1, v%d' % (vT + 7, vT + 7, vT + 8))
    k('v_and_b32 v%d, 7, v%d' % (vT + 8, vN))
    k('v_xor_b32 v%d, v%d, v%d' % (vT + 7, vT + 7, vT + 8))
    k('s_lshl_b32 s%d, s%d, 11' % (sT + 4, sWave))
    k('s_add_u32 s%d, s%d, %d' % (sT + 4, sT + 4, TL))
    k('v_lshlrev_b32 v%d, 7, v%d' % (vT + 8, vN))
    k('v_add_u32 v%d, s%d, v%d' % (vT + 8, sT + 4, vT + 8))
    k('v_lshl_add_u32 v%d, v%d, 4, v%d' % (vTW, vT + 7, vT + 8))
    k('v_xor_b32 v%d, 64, v%d' % (vT + 24, vTW))
    k('v_lshrrev_b32 v%d, 3, v%d' % (vT + 7, vLane))
    k('v_and_b32 v%d, 7, v%d' % (vT + 8, vLane))
    k('v_xor_b32 v%d, v%d, v%d' % (vT + 9, vT + 8, vT + 7))
    k('v_lshlrev_b32 v%d, 7, v%d' % (vTR, vT + 7))
    k('v_lshl_add_u32 v%d, v%d, 4, v%d' % (vTR, vT + 9, vTR))
    k('v_add_u32 v%d, s%d, v%d' % (vTR, sT + 4, vTR))
    k('v_lshlrev_b32 v%d, 17, v%d' % (vUA, vT + 7))
    k('v_lshl_add_u32 v%d, v%d, 4, v%d' % (vUA, vT + 8, vUA))
    k('s_lshl_b32 s%d, s%d, 14' % (sU, sWave))
    k('s_lshl_b32 s%d, s%d, 7' % (sT + 5, sG))
    k('s_add_u32 s%d, s%d, s%d' % (sU, sU, sT + 5))
    k('s_lshl_b32 s%d, s%d, 21' % (sT + 5, sHF))
    k('s_add_u32 s%d, s%d, s%d' % (sU, sU, sT + 5))
    k('s_add_u32 s%d, s%d, 0x100000' % (sU + 1, sU))
    k('v_mul_u32_u24 v%d, 5120, v%d' % (vXA, vN))
    k('s_lshl_b32 s%d, s%d, 9' % (sX, sWave))
    k('s_lshl_b32 s%d, s%d, 2' % (sX + 1, sG))
    k('s_add_u32 s%d, s%d, s%d' % (sX, sX, sX + 1))
    k('s_add_u32 s%d, s%d, 0x1000' % (sX + 1, sX + 1))
    k('s_lshr_b32 s%d, s%d, 9' % (sT + 6, sT))
    k('v_cmp_eq_u32 vcc, 0, v%d' % vLane)
    k('s_waitcnt lgkmcnt(0)')
    k('s_barrier')
    for q in range(11):
        k('ds_read_b128 %s, v%d offset:%d' % (vr(vF2c + 4 * q, 4), vCA, 1024 * q))
    if diag:
        stamp(k, 2)
    P = vT + 2
    if xl:
        k('s_waitcnt vmcnt(0)')
        k('v_add_u32 v%d, 2048, v%d' % (vT + 19, vT + 20))
        for jj in range(2):
            for i in range(0, 8, 2):
                k('ds_read2_b32 %s, v%d offset0:%d offset1:%d' % (vr(vX + 8 * jj + i, 2), vT + 20 - jj, 16 * i, 16 * i + 16))
    for jj in range(2):
        if xl:
            k('s_waitcnt lgkmcnt(%d)' % (4 * (1 - jj)))
        else:
            k('s_waitcnt vmcnt(%d)' % (8 * (1 - jj) + nwarm))
        for i in range(8):
            e = vE + 16 * jj + 2 * i
            k('v_lshlrev_b32 v%d, 16, v%d' % (e, vX + 8 * jj + i))
            k('v_and_b32 v%d, 0xffff0000, v%d' % (e + 1, vX + 8 * jj + i))
        e = vE + 16 * jj
        p = P + 2 * jj
        k('v_pk_add_f32 %s, %s, %s' % (vr(p, 2), vr(e, 2), vr(e + 2, 2)))
        for i in range(2, 8):
            k('v_pk_add_f32 %s, %s, %s' % (vr(p, 2), vr(p, 2), vr(e + 2 * i, 2)))
    if diag:
        stamp(k, 3)

    def reduce4(c):
        k('s_nop 1')
        k('v_permlane32_swap_b32 v%d, v%d' % (c[0], c[1]))
        k('v_permlane32_swap_b32 v%d, v%d' % (c[2], c[3]))
        k('v_add_f32 v%d, v%d, v%d' % (c[0], c[0], c[1]))
        k('v_add_f32 v%d, v%d, v%d' % (c[2], c[2], c[3]))
        k('s_nop 1')
        k('v_permlane16_swap_b32 v%d, v%d' % (c[0], c[2]))
        k('v_add_f32 v%d, v%d, v%d' % (c[0], c[0], c[2]))
        for mode in ('quad_perm:[1,0,3,2]', 'quad_perm:[2,3,0,1]', 'row_half_mirror', 'row_mirror'):
            k('s_nop 1')
            k('v_add_f32_dpp v%d, v%d, v%d %s row_mask:0xf bank_mask:0xf' % (c[0], c[0], c[0], mode))
        k('s_nop 0')
        for i, ln in enumerate([0, 32, 16, 48]):
            k('v_readlane_b32 s%d, v%d, %d' % (sA + i, c[0], ln))
        k('s_nop 1')

    reduce4([P, P + 1, P + 2, P + 3])
    vM = [vT + 6, vT + 8]
    vAl = [vT + 10, vT + 11]
    for jj in range(2):
        k('v_mov_b32 v%d, s%d' % (vT + 12, sA + 2 * jj))
        k('v_add_f32 v%d, s%d, v%d' % (vM[jj], sA + 2 * jj + 1, vT + 12))
        k('v_subrev_f32 v%d, s%d, v%d' % (vAl[jj], sA + 2 * jj + 1, vT + 12))
        k('v_mul_f32 v%d, %s, v%d' % (vM[jj], f32hex(1 / 1024.), vM[jj]))
        k('v_cvt_pk_bf16_f32 v%d, v%d, v%d' % (vM[jj] + 1, vM[jj], vM[jj]))
        k('v_lshlrev_b32 v%d, 16, v%d' % (vM[jj] + 1, vM[jj] + 1))
    for jj in range(2):
        e = vE + 16 * jj
        for i in range(8):
            k('v_pk_add_f32 %s, %s, %s op_sel:[0,1] op_sel_hi:[1,1] neg_lo:[0,1] neg_hi:[0,1]' % (vr(e + 2 * i, 2), vr(e + 2 * i, 2), vr(vM[jj], 2)))
        p = P + 2 * jj
        k('v_pk_mul_f32 %s, %s, %s' % (vr(p, 2), vr(e, 2), vr(e, 2)))
        for i in range(1, 8):
            k('v_pk_fma_f32 %s, %s, %s, %s' % (vr(p, 2), vr(e + 2 * i, 2), vr(e + 2 * i, 2), vr(p, 2)))
    reduce4([P, P + 1, P + 2, P + 3])
    vR = [vT + 12, vT + 14]
    for jj in range(2):
        k('v_mov_b32 v%d, s%d' % (vR[jj], sA + 2 * jj))
    for jj in range(2):
        k('v_add_f32 v%d, s%d, v%d' % (vR[jj], sA + 2 * jj + 1, vR[jj]))
    for jj in range(2):
        k('v_sub_f32 v%d, v%d, v%d' % (vM[jj] + 1, vM[jj], vM[jj] + 1))
        k('v_mul_f32 v%d, %s, v%d' % (vR[jj], f32hex(1 / 1024.), vR[jj]))
        k('v_fma_f32 v%d, -v%d, v%d, v%d' % (vR[jj], vM[jj] + 1, vM[jj] + 1, vR[jj]))
        k('v_max_f32 v%d, 0, v%d' % (vR[jj], vR[jj]))
    seq = ['v_cvt_pk_bf16_f32 v{0}, v{0}, v{0}', 'v_lshlrev_b32 v{0}, 16, v{0}',
           'v_add_f32 v{0}, %s, v{0}' % f32hex(1e-5), 'v_cvt_pk_bf16_f32 v{0}, v{0}, v{0}', 'v_lshlrev_b32 v{0}, 16, v{0}',
           'v_sqrt_f32 v{0}, v{0}', 'v_cvt_pk_bf16_f32 v{0}, v{0}, v{0}', 'v_lshlrev_b32 v{0}, 16, v{0}', 'v_rcp_f32 v{0}, v{0}']
    for ins in seq:
        for jj in range(2):
            k(ins.format(vR[jj]))
        if 'sqrt' in ins or 'rcp' in ins:
            k('s_nop 0')
    k('v_mov_b32 v%d, 0' % (vT + 16))
    k('s_mov_b64 exec, 1')
    k('buffer_store_dword v%d, v%d, s[%d:%d], s%d offen' % (vM[0], vT + 16, RM, RM + 3, sT + 6))
    k('buffer_store_dword v%d, v%d, s[%d:%d], s%d offen offset:512' % (vM[1], vT + 16, RM, RM + 3, sT + 6))
    k('s_mov_b64 exec, -1')
    k('s_waitcnt lgkmcnt(0)')
    if diag:
        stamp(k, 4)
    for jj in range(2):
        e = vE + 16 * jj
        for i in range(8):
            k('v_pk_mul_f32 %s, %s, %s op_sel_hi:[1,0]' % (vr(e + 2 * i, 2), vr(e + 2 * i, 2), vr(vR[jj], 2)))
        k('v_mul_f32 v%d, v%d, v%d' % (vAl[jj], vAl[jj], vR[jj]))
        a = vX + 8 * jj
        for b in range(2):
            for p in range(4):
                k('v_cvt_pk_f16_f32 v%d, v%d, v%d' % (a + 4 * b + p, e + 4 * p + b, e + 4 * p + 2 + b))
        k('v_cvt_pk_f16_f32 v%d, v%d, v%d' % (vAl[jj], vAl[jj], e))
        k('v_cndmask_b32 v%d, 0, v%d, vcc' % (vAl[jj], vAl[jj]))
        for b in range(2):
            k('v_mfma_f32_16x16x32_f16 %s, %s, %s, 0' % (vr(e + 4 * b, 4), vr(a + 4 * b, 4), vr(vF2c, 4)))
            k('v_mfma_f32_16x16x32_f16 %s, %s, %s, 0' % (vr(e + 8 + 4 * b, 4), vr(a + 4 * b, 4), vr(vF2s, 4)))
    k('s_mov_b64 exec, 3')
    for jj in range(2):
        k('ds_write_b32 v%d, v%d offset:%d' % (vLX, vAl[jj], 2 * jj * ROW + 512))
    k('s_mov_b64 exec, -1')
    W = vT + 2
    for jj in range(2):
        e = vE + 16 * jj
        a = vX + 8 * jj
        for h in range(4):
            re, im, c, s, w = e + 2 * h, e + 8 + 2 * h, vTc + 2 * h, vTs + 2 * h, W + 2 * h
            k('v_pk_mul_f32 %s, %s, %s' % (vr(w, 2), vr(re, 2), vr(c, 2)))
            k('v_pk_fma_f32 %s, %s, %s, %s' % (vr(w, 2), vr(im, 2), vr(s, 2), vr(w, 2)))
            k('v_pk_mul_f32 %s, %s, %s' % (vr(im, 2), vr(im, 2), vr(c, 2)))
            k('v_pk_fma_f32 %s, %s, %s, %s neg_lo:[1,0,0] neg_hi:[1,0,0]' % (vr(im, 2), vr(re, 2), vr(s, 2), vr(im, 2)))
        for h in range(4):
            k('v_cvt_pk_f16_f32 v%d, v%d, v%d' % (a + h, W + 2 * h, W + 2 * h + 1))
            k('v_cvt_pk_f16_f32 v%d, v%d, v%d' % (a + 4 + h, e + 8 + 2 * h, e + 9 + 2 * h))
        k('s_nop 1')
        k('v_mfma_f32_16x16x32_f16 %s, %s, %s, 0' % (vr(e, 4), vr(a, 4), vr(vC3, 4)))
        k('v_mfma_f32_16x16x32_f16 %s, %s, %s, 0' % (vr(e + 4, 4), vr(a + 4, 4), vr(vC3, 4)))
        k('v_mfma_f32_16x16x32_f16 %s, %s, %s, %s' % (vr(e, 4), vr(a + 4, 4), vr(vS3, 4), vr(e, 4)))
        k('v_mfma_f32_16x16x32_f16 %s, %s, %s, %s' % (vr(e + 4, 4), vr(a, 4), vr(vS3n, 4), vr(e + 4, 4)))
    for jj in range(2):
        e = vE + 16 * jj
        if jj == 1:
            k('s_nop 3')
        for part in range(2):
            k('v_cvt_pk_f16_f32 v%d, v%d, v%d' % (e + 8 + 2 * part, e + 4 * part, e + 4 * part + 1))
            k('v_cvt_pk_f16_f32 v%d, v%d, v%d' % (e + 9 + 2 * part, e + 4 * part + 2, e + 4 * part + 3))
            k('ds_write_b64 v%d, %s offset:%d' % (vLW, vr(e + 8 + 2 * part, 2), (2 * jj + part) * ROW))
    if diag:
        stamp(k, 5)
    k('s_waitcnt lgkmcnt(0)')
    k('s_barrier')
    FA = vX
    for blk in range(2):
        for hh in range(2):
            k('ds_read_b64_tr_b16 %s, v%d offset:%d' % (vr(FA + 4 * blk + 2 * hh, 2), vRB, 32 * blk + 16 * hh * ROW))
    for hh in range(2):
        k('ds_read_b64_tr_b16 %s, v%d offset:%d' % (vr(FA + 8 + 2 * hh, 2), vRA, 512 + 16 * hh * ROW))
    Dd = vE
    for blk in range(3):
        k('s_waitcnt lgkmcnt(%d)' % (2 * (2 - blk)))
        k('v_mfma_f32_16x16x32_f16 %s, %s, %s, 0' % (vr(Dd + 8 * blk, 4), vr(FA + 4 * blk, 4), vr(vGr, 4)))
        k('v_mfma_f32_16x16x32_f16 %s, %s, %s, 0' % (vr(Dd + 8 * blk + 4, 4), vr(FA + 4 * blk, 4), vr(vGi, 4)))
    k('s_nop 4')
    O = vT + 2
    for part in range(2):
        o = O + part * 4
        for u in range(2):
            d = Dd + 8 * u + 4 * part
            k('v_cvt_pk_f16_f32 v%d, v%d, v%d' % (o + 2 * u, d, d + 1))
            k('v_cvt_pk_f16_f32 v%d, v%d, v%d' % (o + 2 * u + 1, d + 2, d + 3))
    k('v_cvt_pk_f16_f32 v%d, v%d, v%d' % (O + 8, Dd, Dd + 4))
    k('v_cvt_pk_f16_f32 v%d, v%d, v%d' % (O + 9, Dd + 16, Dd + 20))
    k('v_cvt_pk_f16_f32 v%d, v%d, v%d' % (O + 10, Dd + 17, Dd + 21))
    for part in range(2):
        o = O + part * 4
        k('v_permlane16_swap_b32 v%d, v%d' % (o, o + 2))
        k('v_permlane16_swap_b32 v%d, v%d' % (o + 1, o + 3))
        k('ds_write_b128 v%d, %s' % (vTW if part == 0 else vT + 24, vr(o, 4)))
    k('s_waitcnt lgkmcnt(0)')
    for i in range(2):
        k('ds_read_b128 %s, v%d offset:%d' % (vr(vX + 4 * i, 4), vTR, 1024 * i))
    fin = k.newlabel('fin')
    skip = k.newlabel('skip')
    k('s_cmp_lg_u32 s%d, 0' % sHF)
    k('s_cbranch_scc1 %s' % skip)
    k('s_mov_b64 exec, 0xffff')
    k('buffer_store_dword v%d, v%d, s[%d:%d], s%d offen' % (O + 8, vXA, RX2, RX2 + 3, sX))
    k('s_cmp_lg_u32 s%d, 0' % sWave)
    k('s_cbranch_scc1 %s' % skip)
    k('buffer_store_dword v%d, v%d, s[%d:%d], s%d offen' % (O + 9, vXA, RX2, RX2 + 3, sX + 1))
    k('buffer_store_dword v%d, v%d, s[%d:%d], s%d offen offset:512' % (O + 10, vXA, RX2, RX2 + 3, sX + 1))
    k.label(skip)
    k('s_mov_b64 exec, -1')
    for i in range(2):
        k('s_waitcnt lgkmcnt(%d)' % (1 - i))
        k('buffer_store_dwordx4 %s, v%d, s[%d:%d], s%d offen %s' % (vr(vX + 4 * i, 4), vUA, RU, RU + 3, sU + i, stflag))
    k.label(fin)
    if diag:
        k('s_mov_b64 exec, -1')
        stamp_flush(k, kidx, 7, sWS, 56, 2, 0)
    k.label(done)
    k('s_endpgm')
    return dict(name=name, text=k.text(NV, NV), grid=256, block=512, lds=LDS, nst=7)
```

```python
from asmlib import *
from kc import f32hex
from ka3 import WS_X2


def gen_kb(diag=False, kidx=1, name='kb_kernel', pf=(), stflag='', pf_early=True, KPRE=8, NF=0):
    k = K(name)
    XL = 32768
    EL = XL + 16384
    LDS = EL + 4096
    sWS, sWave, sR, sTB, sEB = 4, 28, 29, 30, 31
    sT = 32
    sO = 40
    RX, RU, RX2, RM, RHC, RH, RSS = 12, 16, 20, 24, 48, 52, 56
    vB = 0
    vE = 32
    vA = 184
    vD = 96
    vXd, vXm = 116, 124
    vMd, vMm = 132, 133
    vLane, vN, vQ, vCh, vTt, vTm = 134, 135, 136, 137, 138, 139
    vRA = [140, 141, 142, 143]
    vOd, vOm, vSa, vBp, vBm, vXr, vXr2, vEr = 144, 145, 146, 147, 148, 149, 150, 151
    vT = 152
    NV = 232

    done = k.newlabel('done')
    k('s_cmp_ge_u32 s2, 256')
    k('s_cbranch_scc1 %s' % done)
    if diag:
        stamp(k, 0)
    k('s_load_dwordx2 s[8:9], s[0:1], %d' % KARG['x'])
    k('s_load_dwordx2 s[4:5], s[0:1], %d' % KARG['ws'])
    if pf:
        k('s_load_dwordx4 s[92:95], s[0:1], %d' % KARG['wg'])
        k('s_load_dwordx2 s[96:97], s[0:1], %d' % KARG['wd'])
    k('v_and_b32 v%d, 63, v0' % vLane)
    k('v_lshrrev_b32 v%d, 6, v0' % vT)
    k('v_and_b32 v%d, 15, v0' % vN)
    k('v_readfirstlane_b32 s%d, v%d' % (sWave, vT))
    k('v_lshrrev_b32 v%d, 4, v%d' % (vQ, vLane))
    k('s_and_b32 s%d, s2, 15' % sR)
    k('s_bfe_u32 s%d, s2, 0x10004' % sTB)
    k('s_lshr_b32 s%d, s2, 5' % sEB)
    k('v_bfe_u32 v%d, v%d, 2, 2' % (vT + 3, vLane))
    k('v_lshl_add_u32 v%d, v%d, 3, v%d' % (vT + 3, vQ, vT + 3))
    k('v_lshlrev_b32 v%d, 6, v%d' % (vT + 3, vT + 3))
    k('v_and_b32 v%d, 1, v%d' % (vT + 4, vQ))
    k('v_lshlrev_b32 v%d, 1, v%d' % (vT + 4, vT + 4))
    k('v_and_b32 v%d, 3, v%d' % (vT + 5, vLane))
    k('v_xor_b32 v%d, v%d, v%d' % (vT + 5, vT + 5, vT + 4))
    k('v_lshl_add_u32 v%d, v%d, 4, v%d' % (vT + 3, vT + 5, vT + 3))
    vDU = [vT + 8, vT + 9]
    k('v_add_u32 v%d, %d, v%d' % (vDU[0], 4096, vT + 3))
    k('v_add_u32 v%d, %d, v%d' % (vDU[1], 4096 + 256 - 1024, vT + 3))
    k('v_lshrrev_b32 v%d, 3, v%d' % (vT, vLane))
    k('v_and_b32 v%d, 7, v%d' % (vT + 2, vLane))
    k('s_lshl_b32 s%d, s%d, 3' % (sT, sR))
    k('s_add_u32 s%d, s%d, s%d' % (sT, sT, sEB))
    k('s_lshl_b32 s%d, s%d, 14' % (sT, sT))
    k('s_lshl_b32 s%d, s%d, 12' % (sT + 1, sWave))
    k('s_add_u32 s%d, s%d, s%d' % (sT, sT, sT + 1))
    k('s_add_u32 s%d, s%d, 0x200000' % (sT + 2, sT))
    k('s_lshl_b32 s%d, s%d, 2' % (sT + 3, sTB))
    k('s_add_u32 s%d, s%d, s%d' % (sT + 3, sT + 3, sWave))
    k('s_lshl_b32 s%d, s%d, 8' % (sT + 4, sT + 3))
    k('s_add_u32 s%d, s%d, s%d' % (sT + 4, sT + 4, sR))
    k('v_lshlrev_b32 v%d, 4, v%d' % (vTt, vN))
    k('v_add_u32 v%d, s%d, v%d' % (vTt, sT + 4, vTt))
    k('v_sub_u32 v%d, 0x800, v%d' % (vTm, vTt))
    k('v_and_b32 v%d, 0x7ff, v%d' % (vTm, vTm))
    vDX = [vT + 12 + p for p in range(4)]
    for p in range(2):
        k('v_add_u32 v%d, %d, v%d' % (vT + 3, 8 * p, vT))
        k('v_lshrrev_b32 v%d, 1, v%d' % (vT + 4, vT + 3))
        k('v_xor_b32 v%d, v%d, v%d' % (vT + 4, vT + 4, vT + 2))
        k('v_lshlrev_b32 v%d, 4, v%d' % (vT + 3, vT + 3))
        k('v_add_u32 v%d, s%d, v%d' % (vT + 3, sT + 4, vT + 3))
        k('v_lshlrev_b32 v%d, 11, v%d' % (vT + 5, vT + 3))
        k('v_lshl_add_u32 v%d, v%d, 4, v%d' % (vT + 5, vT + 4, vT + 5))
        k('v_add_u32 v%d, %d, v%d' % (vDX[p], 4096 - 1024 * p, vT + 5))
        k('v_sub_u32 v%d, 0x800, v%d' % (vT + 3, vT + 3))
        k('v_and_b32 v%d, 0x7ff, v%d' % (vT + 3, vT + 3))
        k('v_lshlrev_b32 v%d, 11, v%d' % (vT + 5, vT + 3))
        k('v_lshl_add_u32 v%d, v%d, 4, v%d' % (vT + 5, vT + 4, vT + 5))
        k('v_add_u32 v%d, %d, v%d' % (vDX[2 + p], 4096 - 1024 * (2 + p), vT + 5))
    k('s_lshl_b32 s%d, s%d, 7' % (sT + 5, sEB))
    k('s_sub_u32 s%d, %d, s%d' % (sT + 6, 2048 - 128, sT + 5))
    k('s_add_u32 s%d, s%d, 1' % (sT + 7, sEB))
    k('v_mov_b32 v%d, s%d' % (vT + 3, sT + 7))
    k('v_cmp_gt_u32 vcc, 32, v%d' % vLane)
    k('s_mul_i32 s%d, s%d, 5120' % (sT + 7, sR))
    k('v_and_b32 v%d, 31, v%d' % (vT + 4, vLane))
    k('v_cndmask_b32 v%d, 9, v%d, vcc' % (vT + 3, vT + 3))
    k('v_lshlrev_b32 v%d, 9, v%d' % (vT + 3, vT + 3))
    k('v_lshl_add_u32 v%d, v%d, 4, v%d' % (vT + 16, vT + 4, vT + 3))
    k('v_lshlrev_b32 v%d, 2, v%d' % (vT + 17, vTt))
    k('v_lshlrev_b32 v%d, 2, v%d' % (vT + 18, vTm))

    g = K('x')
    A0, ST, C0, C1, S0, S1, BS, B32 = [vT + 20 + i for i in range(8)]
    g('v_cvt_f32_u32 v%d, v%d' % (ST, vTt))
    g('v_mul_f32 v%d, %s, v%d' % (ST, f32hex(1 / 2048.), ST))
    g('v_cvt_f32_u32 v%d, v%d' % (BS, vQ))
    g('v_mul_f32 v%d, v%d, v%d' % (BS, BS, ST))
    g('v_mul_f32 v%d, 4.0, v%d' % (BS, BS))
    g('v_mul_f32 v%d, %s, v%d' % (B32, f32hex(16.), ST))
    g('v_fract_f32 v%d, v%d' % (B32, B32))
    for ks in range(8):
        g('v_fract_f32 v%d, v%d' % (A0, BS))
        if ks < 7:
            g('v_add_f32 v%d, v%d, v%d' % (BS, A0, B32))
        for p in range(0, 4, 2):
            g('v_cos_f32 v%d, v%d' % (C0, A0))
            g('v_sin_f32 v%d, -v%d' % (S0, A0))
            g('v_add_f32 v%d, v%d, v%d' % (A0, A0, ST))
            g('v_cos_f32 v%d, v%d' % (C1, A0))
            g('v_sin_f32 v%d, -v%d' % (S1, A0))
            if p == 0:
                g('v_add_f32 v%d, v%d, v%d' % (A0, A0, ST))
            g('v_cvt_pk_f16_f32 v%d, v%d, v%d' % (vB + 4 * ks + p, C0, S0))
            g('v_cvt_pk_f16_f32 v%d, v%d, v%d' % (vB + 4 * ks + p + 1, C1, S1))
    gen = [l.strip() for l in g.lines]
    NPRE = 25
    for l in gen[:NPRE]:
        k(l)
    k('s_waitcnt lgkmcnt(0)')
    k('s_sub_u32 s%d, s4, 0x1000' % RU)
    k('s_subb_u32 s%d, s5, 0' % (RU + 1))
    k('s_mov_b32 s%d, 0x%x' % (RU + 2, 0x400000 + 4096))
    k('s_mov_b32 s%d, 0x20000' % (RU + 3))
    assert WS_U == 0
    mem = []
    for hf in range(2):
        for p in range(4):
            pre = ['s_add_u32 m0, s%d, %d' % (sT + 1, 16384 * hf), 's_nop 0'] if p == 0 else []
            mem.append(pre + ['buffer_load_dwordx4 v%d, s[%d:%d], s%d offen offset:%d lds' % (vDU[p & 1], RU, RU + 3, sT + 2 * hf, 1024 * p)])
    e = K('x')
    srd(e, RX2, sWS, 16 * 10 * 512, WS_X2)
    e('s_lshl_b32 s%d, s%d, 10' % (sT + 3, sWave))
    e('s_add_u32 m0, s%d, %d' % (sT + 3, EL))
    e('s_nop 0')
    e('buffer_load_dwordx4 v%d, s[%d:%d], s%d offen lds' % (vT + 16, RX2, RX2 + 3, sT + 7))
    mem.append([l.strip() for l in e.lines])
    e = K('x')
    e('s_sub_u32 s%d, s8, 0x1000' % RX)
    e('s_subb_u32 s%d, s9, 0' % (RX + 1))
    e('s_mov_b32 s%d, 0x%x' % (RX + 2, 2048 * 2048 + 4096))
    e('s_mov_b32 s%d, 0x20000' % (RX + 3))
    e('s_lshl_b32 s%d, s%d, 12' % (sT + 3, sWave))
    e('s_add_u32 m0, s%d, %d' % (sT + 3, XL))
    e('s_nop 0')
    pre = [l.strip() for l in e.lines]
    for p in range(4):
        mem.append((pre if p == 0 else []) + ['buffer_load_dwordx4 v%d, s[%d:%d], s%d offen offset:%d lds' % (vDX[p], RX, RX + 3, sT + 5 + (p >> 1), 1024 * p)])
    e = K('x')
    srd(e, RM, sWS, 8192, WS_XM)
    e('buffer_load_dword v%d, v%d, s[%d:%d], 0 offen' % (vMd, vT + 17, RM, RM + 3))
    mem.append([l.strip() for l in e.lines])
    mem.append(['buffer_load_dword v%d, v%d, s[%d:%d], 0 offen' % (vMm, vT + 18, RM, RM + 3)])
    if pf:
        e = K('x')
        prefetch_w(e, pf, sWave, vLane, dict(wg=92, wu=94, wd=96), 60, 46, vT + 28, vT + 31)
        mem.append([l.strip() for l in e.lines])
    npf = len(pf)
    starts = [i for i, l in enumerate(gen) if l.startswith('v_fract_f32 v%d,' % A0)]
    cut = starts[KPRE] if KPRE < 8 else len(gen)
    gen_late = gen[cut:]
    rest = gen[NPRE:cut]
    for grp in mem[:9]:
        for l in grp:
            k(l)
    others = mem[9:13]
    late = mem[13:]
    if pf and pf_early:
        others = others + late
        late = []
    step = len(rest) // (len(others) + 1)
    oi = 0
    for i, l in enumerate(rest):
        if i % step == step - 1 and oi < len(others):
            for m in others[oi]:
                k(m)
            oi += 1
        k(l)
    assert oi == len(others)
    if diag:
        stamp(k, 1)
    k('v_lshrrev_b32 v%d, 2, v%d' % (vT, vLane))
    k('v_and_b32 v%d, 3, v%d' % (vT + 2, vLane))
    k('v_lshlrev_b32 v%d, 3, v%d' % (vT + 2, vT + 2))
    k('v_lshl_add_u32 v%d, v%d, 6, v%d' % (vT + 2, vT, vT + 2))
    k('v_and_b32 v%d, 1, v%d' % (vT + 1, vQ))
    k('v_lshl_add_u32 v%d, v%d, 5, v%d' % (vRA[0], vT + 1, vT + 2))
    k('v_xor_b32 v%d, 32, v%d' % (vRA[1], vRA[0]))
    k('v_and_b32 v%d, 1, v%d' % (vT, vN))
    k('v_lshlrev_b32 v%d, 9, v%d' % (vT, vT))
    k('v_lshl_add_u32 v%d, v%d, 4, v%d' % (vT, vQ, vT))
    k('s_lshl_b32 s%d, s%d, 10' % (sT + 3, sWave))
    k('s_add_u32 s%d, s%d, %d' % (sT + 3, sT + 3, EL))
    k('v_add_u32 v%d, s%d, v%d' % (vEr, sT + 3, vT))
    kmain = k
    k = K('x')
    vY = vT + 4
    k('v_and_b32 v%d, 1, v%d' % (vT, vQ))
    k('v_lshrrev_b32 v%d, 1, v%d' % (vT + 1, vQ))
    k('v_lshl_add_u32 v%d, v%d, 1, v%d' % (vCh, vT, vT + 1))

    def tau_addr(dst, vt, ch):
        k('v_bfe_u32 v%d, v%d, 1, 3' % (vY, vt))
        k('v_lshlrev_b32 v%d, 19, v%d' % (dst, vY))
        k('v_and_b32 v%d, 1, v%d' % (vY, vt))
        k('v_lshl_add_u32 v%d, v%d, 13, v%d' % (dst, vY, dst))
        k('v_lshrrev_b32 v%d, 8, v%d' % (vY, vt))
        k('v_lshl_add_u32 v%d, v%d, 10, v%d' % (dst, vY, dst))
        k('v_bfe_u32 v%d, v%d, 4, 4' % (vY, vt))
        k('v_lshl_add_u32 v%d, v%d, 4, v%d' % (dst, vY, dst))
        k('v_lshl_add_u32 v%d, v%d, 8, v%d' % (dst, ch, dst))

    k('v_lshrrev_b32 v%d, 1, v%d' % (vY, vN))
    k('v_xor_b32 v%d, v%d, v%d' % (vY, vY, vCh))
    k('s_lshl_b32 s%d, s%d, 12' % (sT + 3, sWave))
    k('s_add_u32 s%d, s%d, %d' % (sT + 3, sT + 3, XL))
    k('v_lshlrev_b32 v%d, 7, v%d' % (vY + 1, vN))
    k('v_add_u32 v%d, s%d, v%d' % (vY + 1, sT + 3, vY + 1))
    vXa = [vT + 8 + i for i in range(4)]
    for i, x in enumerate((0, 4, 7, 3)):
        k('v_xor_b32 v%d, %d, v%d' % (vY + 2, x, vY))
        k('v_lshl_add_u32 v%d, v%d, 4, v%d' % (vXa[i], vY + 2, vY + 1))
    tau_addr(vOd, vTt, vCh)
    k('v_sub_u32 v%d, 3, v%d' % (vY + 1, vCh))
    tau_addr(vOm, vTm, vY + 1)
    k('s_lshl_b32 s%d, s%d, 15' % (sO, sEB))
    k('s_add_u32 s%d, s%d, 0x4000' % (sO + 1, sO))
    k('s_sub_u32 s%d, 0x%x, s%d' % (sO + 2, 31 * 16384, sO))
    k('s_sub_u32 s%d, s%d, 0x4000' % (sO + 3, sO + 2))
    k('v_cmp_gt_u32 vcc, 32, v%d' % vLane)
    k('v_lshrrev_b32 v%d, 5, v%d' % (vY + 1, vLane))
    k('s_nop 0')
    k('v_cndmask_b32 v%d, v%d, v%d, vcc' % (vY, vTm, vTt))
    k('v_and_b32 v%d, 15, v%d' % (vSa, vY))
    k('v_lshlrev_b32 v%d, 13, v%d' % (vSa, vSa))
    k('v_lshrrev_b32 v%d, 4, v%d' % (vY, vY))
    k('v_lshl_add_u32 v%d, v%d, 6, v%d' % (vSa, vY, vSa))
    k('v_lshl_add_u32 v%d, v%d, 5, v%d' % (vSa, vY + 1, vSa))
    k('s_lshl_b32 s%d, s%d, 2' % (sO + 4, sEB))
    k('v_lshlrev_b32 v%d, 2, v%d' % (vBm, vN))
    k('v_lshlrev_b32 v%d, 1, v%d' % (vY, vQ))
    k('v_mov_b32 v%d, 0x1e' % (vY + 1))
    k('v_lshrrev_b32 v%d, v%d, v%d' % (vY, vY, vY + 1))
    k('v_and_b32 v%d, 3, v%d' % (vY, vY))
    k('v_lshl_add_u32 v%d, v%d, 6, v%d' % (vBp, vY, vBm))
    k('v_cmp_gt_u32 vcc, 16, v%d' % vLane)
    srd(k, RHC, sWS, 0x400000, WS_HC)
    srd(k, RH, sWS, 16384, WS_MU)
    srd(k, RSS, sWS, 2048 * 64, WS_SS)
    fill = gen_late + [l.strip() for l in k.lines]
    k = kmain
    if NF == 0:
        for l in fill:
            k(l)
        fill = []
    if diag:
        stamp(k, 2)
    k('s_waitcnt vmcnt(%d)' % len(others))
    k('s_barrier')
    if diag:
        stamp(k, 3)
    units = []
    for ks in range(8):
        units.append((['ds_read_b128 %s, v%d offset:%d' % (vr(vE + 4 * ks, 4), vEr, 64 * ks)], vE + 4 * ks, vD + 16, ks))
        for b in range(4):
            hf, par = b >> 1, b & 1
            a = vA + 16 * (ks % 3) + 4 * b
            units.append((['ds_read_b64_tr_b16 %s, v%d offset:%d' % (vr(a + 2 * hh, 2), vRA[par], hf * 16384 + ks * 2048 + hh * 1024) for hh in range(2)], a, vD + 4 * b, ks))
    xreads = ['ds_read_b128 %s, v%d offset:%d' % (vr(dst, 4), vXa[i], 2048 * (i >> 1)) for i, dst in enumerate((vXd, vXd + 4, vXm, vXm + 4))]
    AHEAD = 7
    nissued = 0
    ends = []
    tot = 0
    for u in units:
        tot += len(u[0])
        ends.append(tot)
    for u in range(AHEAD):
        for l in units[u][0]:
            k(l)
            nissued += 1
    for u, (rd, a, d, ks) in enumerate(units):
        k('s_waitcnt lgkmcnt(%d)' % (nissued - ends[u]))
        k('v_mfma_f32_16x16x32_f16 %s, %s, %s, %s' % (vr(d, 4), vr(a, 4), vr(vB + 4 * ks, 4), '0' if ks == 0 else vr(d, 4)))
        if u + AHEAD < len(units):
            for l in units[u + AHEAD][0]:
                k(l)
                nissued += 1
        elif u + AHEAD == len(units):
            k('s_waitcnt vmcnt(%d)' % (2 + npf))
            for l in xreads:
                k(l)
                nissued += 1
        for _ in range(NF):
            if fill:
                k(fill.pop(0))
        if u in (2, 6, 10) and late:
            idx = (2, 6, 10).index(u)
            if idx < len(late):
                for l in late[idx]:
                    k(l)
    for l in fill:
        k(l)
    if diag:
        stamp(k, 4)
    W = vB
    k('s_waitcnt lgkmcnt(0)')
    for mir in range(2):
        for be in range(2):
            X = (vXm if mir else vXd) + 4 * be
            w = vE + 8 * (2 * mir + be)
            for i in range(4):
                k('v_lshlrev_b32 v%d, 16, v%d' % (w + 2 * i, X + i))
                k('v_and_b32 v%d, 0xffff0000, v%d' % (w + 2 * i + 1, X + i))
    for be in range(2):
        for i in range(4):
            k('v_permlane16_swap_b32 v%d, v%d' % (vD + 4 * be + i, vD + 8 + 4 * be + i))
    vF = vT
    k('v_cndmask_b32 v%d, v%d, v%d, vcc' % (vF, vD, vD + 4))
    k('v_cndmask_b32 v%d, v%d, v%d, vcc' % (vF + 1, vD + 4, vD + 16))
    k('ds_bpermute_b32 v%d, v%d, v%d' % (vF + 2, vBm, vD + 17))
    k('ds_bpermute_b32 v%d, v%d, v%d' % (vF, vBp, vF))
    k('ds_bpermute_b32 v%d, v%d, v%d' % (vF + 1, vBp, vF + 1))
    vMu = vT + 4
    vS = vT + 8
    for mir in range(2):
        if mir:
            k('s_waitcnt vmcnt(%d) lgkmcnt(0)' % npf)
            k('v_add_f32 v%d, v%d, v%d' % (vMu, vMd, vF + 2))
            k('v_add_f32 v%d, v%d, v%d' % (vMu + 2, vMm, vF + 2))
        for be in range(2):
            el = [vD + 4 * be + i for i in range(4)] + [vD + 8 + 4 * be + i for i in range(4)]
            w = vE + 8 * (2 * mir + be)
            if mir:
                el = [vF + be] + el[:0:-1]
                for i in range(8):
                    k('v_add_f32 v%d, v%d, v%d' % (w + i, w + i, el[i]))
            else:
                for i in range(4):
                    k('v_pk_add_f32 %s, %s, %s' % (vr(w + 2 * i, 2), vr(w + 2 * i, 2), vr(el[2 * i], 2)))
    k('v_cvt_pk_bf16_f32 v%d, v%d, v%d' % (vF, vMu, vMu + 2))
    k('v_lshlrev_b32 v%d, 16, v%d' % (vF + 1, vF))
    k('v_and_b32 v%d, 0xffff0000, v%d' % (vF, vF))
    k('v_sub_f32 v%d, v%d, v%d' % (vMu + 1, vMu, vF + 1))
    k('v_sub_f32 v%d, v%d, v%d' % (vMu + 3, vMu + 2, vF))
    k('v_mov_b32 v%d, v%d' % (vMu, vF + 1))
    k('v_mov_b32 v%d, v%d' % (vMu + 2, vF))
    k('v_mul_f32 v%d, 4.0, v%d' % (vMu + 1, vMu + 1))
    k('v_mul_f32 v%d, 4.0, v%d' % (vMu + 3, vMu + 3))
    for mir in range(2):
        for be in range(2):
            w = vE + 8 * (2 * mir + be)
            c = W + 4 * (2 * mir + be)
            for i in range(4):
                k('v_pk_add_f32 %s, %s, %s op_sel_hi:[1,0] neg_lo:[0,1] neg_hi:[0,1]' % (vr(w + 2 * i, 2), vr(w + 2 * i, 2), vr(vMu + 2 * mir, 2)))
            for i in range(4):
                k('v_cvt_pk_bf16_f32 v%d, v%d, v%d' % (c + i, w + 2 * i, w + 2 * i + 1))
            k('buffer_store_dwordx4 %s, v%d, s[%d:%d], s%d offen %s' % (vr(c, 4), vOm if mir else vOd, RHC, RHC + 3, sO + 2 * mir + be, stflag))
    for mir in range(2):
        s = vS + 2 * mir
        for q in range(8):
            w = vE + 16 * mir + 2 * q
            if q == 0:
                k('v_pk_mul_f32 %s, %s, %s' % (vr(s, 2), vr(w, 2), vr(w, 2)))
            else:
                k('v_pk_fma_f32 %s, %s, %s, %s' % (vr(s, 2), vr(w, 2), vr(w, 2), vr(s, 2)))
    k('v_add_f32 v%d, v%d, v%d' % (vS, vS, vS + 1))
    k('v_add_f32 v%d, v%d, v%d' % (vS + 2, vS + 2, vS + 3))
    k('v_fma_f32 v%d, -v%d, v%d, v%d' % (vS, vMu + 1, vMu + 1, vS))
    k('v_fma_f32 v%d, -v%d, v%d, v%d' % (vS + 2, vMu + 3, vMu + 3, vS + 2))
    k('s_nop 1')
    k('v_permlane32_swap_b32 v%d, v%d' % (vS, vS + 2))
    k('v_add_f32 v%d, v%d, v%d' % (vS, vS, vS + 2))
    k('v_mov_b32 v%d, v%d' % (vS + 1, vS))
    k('s_nop 1')
    k('v_permlane16_swap_b32 v%d, v%d' % (vS, vS + 1))
    k('v_add_f32 v%d, v%d, v%d' % (vS, vS, vS + 1))
    k('s_mov_b32 s%d, 0xffff' % (sT + 4))
    k('s_mov_b32 s%d, 0xffff' % (sT + 5))
    k('s_mov_b64 exec, s[%d:%d]' % (sT + 4, sT + 5))
    k('buffer_store_dword v%d, v%d, s[%d:%d], s%d offen' % (vS, vSa, RSS, RSS + 3, sO + 4))
    nomu = k.newlabel('nomu')
    k('s_cmp_lg_u32 s%d, 0' % sEB)
    k('s_cbranch_scc1 %s' % nomu)
    k('v_lshrrev_b32 v%d, 6, v%d' % (vS + 1, vSa))
    k('v_lshrrev_b32 v%d, 5, v%d' % (vS + 2, vLane))
    k('v_lshlrev_b32 v%d, 13, v%d' % (vS + 2, vS + 2))
    k('v_lshl_add_u32 v%d, v%d, 2, v%d' % (vS + 1, vS + 1, vS + 2))
    k('v_cndmask_b32 v%d, v%d, v%d, vcc' % (vS + 2, vMu + 2, vMu))
    k('buffer_store_dword v%d, v%d, s[%d:%d], 0 offen' % (vS + 2, vS + 1, RH, RH + 3))
    k.label(nomu)
    if diag:
        k('s_mov_b64 exec, -1')
        stamp_flush(k, kidx, 6, sWS, 56, 2, 0)
    k.label(done)
    k('s_endpgm')
    return dict(name=name, text=k.text(NV, NV), grid=256, block=256, lds=LDS, nst=6)
```

```python
from asmlib import *
from kc import f32hex, LOG2E


def gen_kc(diag=False, kidx=2, name='kc_kernel', LA=4, rot=8, rd_end=0.7, pf_wd=0, stflag='sc1', tokflag='', bar2=False,
           overlap=True, nodma=False, prio=False, xmap='8x4', pf_from=20, lead=0, S0=8, ndes=1, pf1=0, ct=(), rd_start=0.0, dma_pos=(0.0, 1.0), order='jb', nolds=False, place='', addtid=False, cp=0, cpd=5, cpflag='sc1', pfx=()):
    k = K(name)
    NW, NS, TB = 4, 5, 8
    NACC = TB * 7 * 4
    MB = NACC
    SLOT = 16384 + 7168 + 16 + 7168
    GOFF = 16384
    UOFF = 7184
    RS = NS * SLOT
    LDS = RS + 4096
    TD, WD = 4, 4
    D = TD + WD
    FSET = (TB + 7) * 4
    vTok = [MB + 0, MB + 1, MB + 2]
    vW = [MB + 3, MB + 4, MB + 5]
    vW6 = [MB + 6, MB + 7, MB + 8]
    vDT = MB + 9
    vDW = [MB + 10 + i for i in range(4)]
    vLane = MB + 14
    vPF = MB + 15
    vTab = MB + 31
    vT = MB + 16
    sWS, sWave, sRT, sCT, sTO, sWO, sRho, sMT, sMW = 4, 28, 29, 30, 31, 32, 33, 36, 37
    sEx = 38
    sSS = 35
    s4k = 40
    sT = 41
    RT, RW, RO, RSS, RP = 12, 16, 20, 24, 52

    def acc(j, b):
        return (j * 7 + b) * 4

    def fT(s, j):
        return s * FSET + j * 4

    def fW(s, b):
        return s * FSET + TB * 4 + b * 4

    done = k.newlabel('done')
    k('s_cmp_ge_u32 s2, 256')
    k('s_cbranch_scc1 %s' % done)
    if diag:
        stamp(k, 0)
    k('s_load_dwordx4 s[8:11], s[0:1], %d' % KARG['wg'])
    k('s_load_dwordx2 s[4:5], s[0:1], %d' % KARG['ws'])
    k('s_load_dwordx2 s[6:7], s[0:1], %d' % KARG['wd'])
    k('v_and_b32 v%d, 63, v0' % vLane)
    k('v_lshrrev_b32 v%d, 6, v0' % vT)
    k('v_mov_b32 v%d, v0' % (vT + 8))
    k('v_readfirstlane_b32 s%d, v%d' % (sWave, vT))
    k('s_and_b32 s%d, s2, 7' % sT)
    k('s_lshr_b32 s%d, s2, 3' % (sT + 1))
    if xmap == '8x4':
        k('s_lshr_b32 s%d, s%d, 2' % (sRT, sT + 1))
        k('s_and_b32 s%d, s%d, 3' % (sT + 1, sT + 1))
        k('s_lshl_b32 s%d, s%d, 2' % (sT, sT))
        k('s_add_u32 s%d, s%d, s%d' % (sCT, sT, sT + 1))
        k('s_lshl_b32 s%d, s%d, 1' % (sRho, sT + 1))
        k('s_add_u32 s%d, s%d, s%d' % (sRho, sRho, sRT))
    else:
        k('s_and_b32 s%d, s%d, 6' % (sRT, sT))
        k('s_lshr_b32 s%d, s%d, 4' % (sCT, sT + 1))
        k('s_add_u32 s%d, s%d, s%d' % (sRT, sRT, sCT))
        k('s_lshl_b32 s%d, s%d, 2' % (sRho, sCT))
        k('s_and_b32 s%d, s%d, 1' % (sCT, sT))
        k('s_lshl_b32 s%d, s%d, 4' % (sCT, sCT))
        k('s_and_b32 s%d, s%d, 15' % (sT + 1, sT + 1))
        k('s_add_u32 s%d, s%d, s%d' % (sCT, sCT, sT + 1))
        k('s_lshr_b32 s%d, s%d, 1' % (sT, sT))
        k('s_add_u32 s%d, s%d, s%d' % (sRho, sRho, sT))
        k('s_add_u32 s%d, s%d, s%d' % (sRho, sRho, sT + 1))
    k('s_and_b32 s%d, s%d, 1' % (sT + 2, sWave))
    k('s_lshr_b32 s%d, s%d, 1' % (sT + 3, sWave))
    k('v_lshlrev_b32 v%d, 4, v%d' % (vT, vLane))
    k('s_mul_i32 s%d, s%d, %d' % (sMT, sWave, TD * 1024))
    k('v_add_u32 v%d, s%d, v%d' % (vDT, sMT, vT))
    k('s_mul_i32 s%d, s%d, 224' % (sT + 5, sCT))
    k('s_mul_i32 s%d, s%d, %d' % (sT + 4, sT + 3, 4 * 7168))
    k('s_add_u32 s%d, s%d, s%d' % (sT + 5, sT + 5, sT + 4))
    for i in range(WD):
        k('v_add_u32 v%d, %d, v%d' % (vT + 1, 64 * i, vLane))
        k('v_mul_u32_u24 v%d, 4682, v%d' % (vT + 2, vT + 1))
        k('v_lshrrev_b32 v%d, 16, v%d' % (vT + 2, vT + 2))
        k('v_and_b32 v%d, 12, v%d' % (vT + 3, vT + 2))
        k('v_add_u32 v%d, v%d, v%d' % (vT + 3, vT + 3, vT + 2))
        k('v_mul_u32_u24 v%d, 7168, v%d' % (vT + 3, vT + 3))
        k('v_mul_u32_u24 v%d, 224, v%d' % (vT + 2, vT + 2))
        k('v_lshl_add_u32 v%d, v%d, 4, v%d' % (vT + 3, vT + 1, vT + 3))
        k('v_sub_u32 v%d, v%d, v%d' % (vT + 3, vT + 3, vT + 2))
        k('s_add_u32 s%d, s%d, %d' % (sT + 4, sT + 5, 4096 - 1024 * i))
        k('v_add_u32 v%d, s%d, v%d' % (vDW[i], sT + 4, vT + 3))
    k('s_mul_i32 s%d, s%d, %d' % (sMW, sT + 2, UOFF))
    k('s_mul_i32 s%d, s%d, %d' % (sT + 4, sT + 3, 16 * 224))
    k('s_add_u32 s%d, s%d, s%d' % (sMW, sMW, sT + 4))
    k('s_add_u32 s%d, s%d, %d' % (sMW, sMW, GOFF))
    k('s_mov_b32 s%d, -1' % sEx)
    k('s_mov_b32 s%d, 0' % (sEx + 1))
    k('s_movk_i32 s%d, 0x1000' % s4k)
    k('s_lshl_b32 s%d, s%d, 19' % (sT, sRT))
    k('s_add_u32 s%d, s%d, 0x%x' % (sT, sT, WS_HC))
    k('s_waitcnt lgkmcnt(0)')
    if diag:
        stamp(k, 1)
    k('s_add_u32 s%d, s4, s%d' % (RT, sT))
    k('s_addc_u32 s%d, s5, 0' % (RT + 1))
    if addtid:
        k('s_add_u32 s%d, s%d, s%d' % (RT, RT, sMT))
        k('s_addc_u32 s%d, s%d, 0' % (RT + 1, RT + 1))
        k('s_or_b32 s%d, s%d, 0x100000' % (RT + 1, RT + 1))
        k('s_mov_b32 s%d, 0x8000' % (RT + 2))
        k('s_mov_b32 s%d, 0x820000' % (RT + 3))
    else:
        k('s_mov_b32 s%d, 0x80000' % (RT + 2))
        k('s_mov_b32 s%d, 0x20000' % (RT + 3))
    k('s_cmp_eq_u32 s%d, 0' % (sT + 2))
    k('s_cselect_b32 s%d, s8, s10' % RW)
    k('s_cselect_b32 s%d, s9, s11' % (RW + 1))
    k('s_sub_u32 s%d, s%d, 0x1000' % (RW, RW))
    k('s_subb_u32 s%d, s%d, 0' % (RW + 1, RW + 1))
    k('s_mov_b32 s%d, 0x%x' % (RW + 2, 1024 * 7168 + 4096))
    k('s_mov_b32 s%d, 0x20000' % (RW + 3))

    def dma_groups(st):
        slot = (st % NS) * SLOT
        g = []
        if lead and st < 2:
            assert S0 - lead >= 2
            pre = ['s_mov_b32 s%d, 0x%x' % (sTO, st << 14), 's_mov_b32 s%d, 0x%x' % (sWO, st * 32 * 7168)]
        elif lead:
            pre = ['v_readlane_b32 s%d, v%d, %d' % (sTO, vTab, st), 's_nop 1',
                   's_mul_i32 s%d, s%d, %d' % (sWO, sTO, 32 * 7168), 's_lshl_b32 s%d, s%d, 14' % (sTO, sTO)]
        elif rot:
            pre = ['s_add_u32 s%d, s%d, %d' % (sTO, sRho, st % rot), 's_and_b32 s%d, s%d, %d' % (sTO, sTO, rot - 1),
                   's_add_u32 s%d, s%d, %d' % (sTO, sTO, st - st % rot),
                   's_mul_i32 s%d, s%d, %d' % (sWO, sTO, 32 * 7168), 's_lshl_b32 s%d, s%d, 14' % (sTO, sTO)]
        else:
            pre = ['s_mov_b32 s%d, 0x%x' % (sTO, st << 14), 's_mov_b32 s%d, 0x%x' % (sWO, st * 32 * 7168)]
        for i in range(WD):
            ins = 'buffer_load_dwordx4 v%d, s[%d:%d], s%d offen offset:%d lds' % (vDW[i], RW, RW + 3, sWO, 1024 * i)
            if i == 0:
                g.append(['s_add_u32 m0, s%d, %d' % (sMW, slot)] + pre + [ins])
            elif i == WD - 1:
                g.append(['s_mov_b64 exec, s[%d:%d]' % (sEx, sEx + 1), ins, 's_mov_b64 exec, -1'])
            else:
                g.append([ins])
        for i in range(TD):
            ins = 'buffer_load_dwordx4 v%d, s[%d:%d], s%d offen offset:%d %s lds' % (vDT, RT, RT + 3, sTO, 1024 * i, tokflag)
            if addtid:
                ins = 'buffer_load_dwordx4 off, s[%d:%d], s%d offset:%d lds' % (RT, RT + 3, sTO, 1024 * i)
            if i == 0:
                g.append(['s_add_u32 m0, s%d, %d' % (sMT, slot), 's_nop 0', ins])
            else:
                g.append([ins])
        return g

    def read_groups(st):
        s = st & 1
        sl = st % NS
        bi, so = sl >> 1, (sl & 1) * SLOT
        g = [['ds_read_b128 %s, v%d offset:%d' % (ar(fT(s, 0), 4), vTok[bi], so)]]
        for b in range(7):
            for hh in range(2):
                if b < 6:
                    off = hh * 3584 + 32 * (b % 3) + (UOFF if b >= 3 else 0)
                    g.append(['ds_read_b64_tr_b16 %s, v%d offset:%d' % (ar(fW(s, b) + 2 * hh, 2), vW[bi], so + off)])
                else:
                    g.append(['ds_read_b64_tr_b16 %s, v%d offset:%d' % (ar(fW(s, b) + 2 * hh, 2), vW6[bi], so + hh * 3584)])
        for j in range(1, TB):
            g.append(['ds_read_b128 %s, v%d offset:%d' % (ar(fT(s, j), 4), vTok[bi], so + 1024 * j)])
        return g

    def emit(groups):
        for grp in groups:
            for l in grp:
                k(l)

    emit(dma_groups(0))
    emit(dma_groups(1))
    if diag:
        stamp(k, 2)
    if lead:
        k('s_and_b32 s%d, s%d, 7' % (sRho, sRho))
        order_table(k, 32, S0, lead, ndes, sRho, 60, vLane, vT + 1, vTab)
    srd(k, RO, sWS, 2048 * 3584 * 2, WS_ACT)
    srd(k, RP, 6, 3584 * 2048)
    k('s_mul_i32 s%d, s%d, %d' % (sT + 4, sT + 3, TB * 1024))
    k('v_add_u32 v%d, s%d, v%d' % (vTok[0], sT + 4, vT))
    k('v_lshrrev_b32 v%d, 2, v%d' % (vT + 1, vLane))
    k('v_mul_u32_u24 v%d, 224, v%d' % (vT + 1, vT + 1))
    k('s_mul_i32 s%d, s%d, 112' % (sT + 4, sT + 2))
    k('s_add_u32 s%d, s%d, %d' % (sT + 4, sT + 4, GOFF))
    k('v_add_u32 v%d, s%d, v%d' % (vT + 1, sT + 4, vT + 1))
    k('v_and_b32 v%d, 3, v%d' % (vT + 2, vLane))
    k('v_lshl_add_u32 v%d, v%d, 3, v%d' % (vW[0], vT + 2, vT + 1))
    k('v_lshrrev_b32 v%d, 1, v%d' % (vT + 3, vT + 2))
    k('v_lshl_add_u32 v%d, v%d, 3, v%d' % (vW6[0], vT + 3, vT + 1))
    k('v_and_b32 v%d, 1, v%d' % (vT + 3, vT + 2))
    k('v_mul_u32_u24 v%d, %d, v%d' % (vT + 3, UOFF, vT + 3))
    k('v_add3_u32 v%d, v%d, v%d, %d' % (vW6[0], vW6[0], vT + 3, 48))
    k('v_add_u32 v%d, 48, v%d' % (vW6[0], vW6[0]))
    for bi in (1, 2):
        for v in (vTok, vW, vW6):
            k('v_add_u32 v%d, %d, v%d' % (v[bi], 2 * bi * SLOT, v[0]))
    if pf_wd or pfx:
        k('s_lshr_b32 s%d, s2, 3' % (sT + 4))
        k('s_lshl_b32 s%d, s%d, 2' % (sT + 4, sT + 4))
        k('s_add_u32 s%d, s%d, s%d' % (sT + 4, sT + 4, sWave))
        k('s_lshl_b32 s%d, s%d, 14' % (sT + 4, sT + 4))
        k('s_and_b32 s%d, s2, 1' % (sT + 5))
        k('s_mul_i32 s%d, s%d, %d' % (sT + 5, sT + 5, 1024 + (1792 * 2048 if xmap != '8x4' else 0)))
        k('s_add_u32 s%d, s%d, s%d' % (sT + 4, sT + 4, sT + 5))
        k('v_lshrrev_b32 v%d, 3, v%d' % (vT + 1, vLane))
        k('v_lshlrev_b32 v%d, 11, v%d' % (vT + 1, vT + 1))
        k('v_and_b32 v%d, 7, v%d' % (vT + 2, vLane))
        k('v_lshl_add_u32 v%d, v%d, 7, v%d' % (vT + 1, vT + 2, vT + 1))
        k('v_add_u32 v%d, s%d, v%d' % (vPF, sT + 4, vT + 1))
    if ct:
        code_touch_setup(k, 56, sWave, vLane, sT + 4, vT + 9)
    RWD = 60
    aCP = 136
    if cp:
        k('v_lshrrev_b32 v%d, 3, v%d' % (vT + 1, vLane))
        k('v_and_b32 v%d, 6, v%d' % (vT + 2, vT + 1))
        k('v_and_b32 v%d, 7, v%d' % (vT + 3, vLane))
        k('v_xor_b32 v%d, v%d, v%d' % (vT + 3, vT + 3, vT + 2))
        k('v_and_b32 v%d, 3, v%d' % (vT + 2, vT + 1))
        k('v_lshrrev_b32 v%d, 2, v%d' % (vT + 1, vT + 1))
        k('v_lshl_add_u32 v%d, v%d, 3, v%d' % (vT + 2, vT + 1, vT + 2))
        k('v_lshlrev_b32 v%d, 11, v%d' % (vT + 2, vT + 2))
        k('v_lshl_add_u32 v%d, v%d, 4, v%d' % (vT + 2, vT + 3, vT + 2))
        k('s_lshl_b32 s%d, s%d, 4' % (sT + 4, sT + 2))
        k('s_lshl_b32 s%d, s%d, 2' % (sT + 5, sT + 3))
        k('s_add_u32 s%d, s%d, s%d' % (sT + 4, sT + 4, sT + 5))
        k('s_and_b32 s%d, s2, 15' % (sT + 5))
        k('s_mul_i32 s%d, s%d, 224' % (sT + 5, sT + 5))
        k('s_add_u32 s%d, s%d, s%d' % (sT + 4, sT + 4, sT + 5))
        k('s_lshl_b32 s%d, s%d, 11' % (sT + 4, sT + 4))
        k('s_lshr_b32 s%d, s2, 4' % (sT + 5))
        k('s_lshl_b32 s%d, s%d, 7' % (sT + 5, sT + 5))
        k('s_add_u32 s%d, s%d, s%d' % (sT + 4, sT + 4, sT + 5))
        k('v_add_u32 v%d, s%d, v%d' % (vPF, sT + 4, vT + 2))
        k('s_mul_i32 s%d, s2, %d' % (sT + 4, 7 * 4096))
        k('s_lshl_b32 s%d, s%d, 10' % (sT + 5, sWave))
        k('s_add_u32 s%d, s%d, s%d' % (sT + 4, sT + 4, sT + 5))
        k('v_add_u32 v%d, s%d, v%d' % (vT + 10, sT + 4, vT))
        srd(k, RWD, sWS, 3584 * 2048, WS_WD)
    if pf1:
        k('v_min_u32 v%d, 55, v%d' % (vT + 1, vLane))
        k('v_lshlrev_b32 v%d, 7, v%d' % (vT + 1, vT + 1))
        k('s_lshl_b32 s%d, s2, 2' % (sT + 4))
        k('s_add_u32 s%d, s%d, s%d' % (sT + 4, sT + 4, sWave))
        k('s_mul_i32 s%d, s%d, 7168' % (sT + 4, sT + 4))
        k('v_add_u32 v%d, s%d, v%d' % (vPF, sT + 4, vT + 1))
    k('s_waitcnt vmcnt(%d)' % D)
    if diag:
        stamp(k, 3)
    k('s_barrier')
    emit(read_groups(0))
    srd(k, RSS, sWS, 2048 * 64, WS_SS)
    aS = 2 * FSET
    k('s_lshl_b32 s%d, s%d, 14' % (sSS, sRT))
    k('s_lshl_b32 s%d, s%d, 12' % (sT + 4, sWave))
    k('s_add_u32 s%d, s%d, s%d' % (sSS, sSS, sT + 4))
    stat_loads = [['buffer_load_dwordx4 %s, v%d, s[%d:%d], s%d offen offset:%d' % (ar(aS + 4 * i, 4), vT, RSS, RSS + 3, sSS, 1024 * i)] for i in range(4)]
    e = K('x')
    a_, b_ = vT + 1, vT + 2
    R4 = [vT + 3, vT + 4, vT + 5, vT + 6]
    for i in range(4):
        e('v_accvgpr_read_b32 v%d, a%d' % (R4[i], aS + 4 * i))
        e('v_accvgpr_read_b32 v%d, a%d' % (a_, aS + 4 * i + 1))
        e('v_accvgpr_read_b32 v%d, a%d' % (b_, aS + 4 * i + 2))
        e('v_add_f32 v%d, v%d, v%d' % (R4[i], R4[i], a_))
        e('v_accvgpr_read_b32 v%d, a%d' % (a_, aS + 4 * i + 3))
        e('v_add_f32 v%d, v%d, v%d' % (R4[i], R4[i], b_))
        e('v_add_f32 v%d, v%d, v%d' % (R4[i], R4[i], a_))
    e('v_and_b32 v%d, 3, v%d' % (a_, vLane))
    e('s_nop 0')
    for mode in ('quad_perm:[1,0,3,2]', 'quad_perm:[2,3,0,1]'):
        for i in range(4):
            e('v_add_f32_dpp v%d, v%d, v%d %s row_mask:0xf bank_mask:0xf' % (R4[i], R4[i], R4[i], mode))
    for i in range(1, 4):
        e('v_cmp_eq_u32 vcc, %d, v%d' % (i, a_))
        e('s_nop 1')
        e('v_cndmask_b32 v%d, v%d, v%d, vcc' % (R4[0], R4[0], R4[i]))
    V = R4[0]
    e('v_mul_f32 v%d, %s, v%d' % (V, f32hex(1.0 / 1024), V))
    e('v_max_f32 v%d, 0, v%d' % (V, V))
    e('v_cvt_pk_bf16_f32 v%d, v%d, v%d' % (V, V, V))
    e('v_lshlrev_b32 v%d, 16, v%d' % (V, V))
    e('v_add_f32 v%d, %s, v%d' % (V, f32hex(1e-5), V))
    e('v_cvt_pk_bf16_f32 v%d, v%d, v%d' % (V, V, V))
    e('v_lshlrev_b32 v%d, 16, v%d' % (V, V))
    e('v_sqrt_f32 v%d, v%d' % (V, V))
    e('v_lshrrev_b32 v%d, 2, v%d' % (b_, vLane))
    e('v_cvt_pk_bf16_f32 v%d, v%d, v%d' % (V, V, V))
    e('v_lshlrev_b32 v%d, 16, v%d' % (V, V))
    e('v_rcp_f32 v%d, v%d' % (vT + 10, V))
    e('v_mul_f32 v%d, v%d, v%d' % (vT + 12, V, V))
    e('v_mul_f32 v%d, %s, v%d' % (vT + 10, f32hex(-LOG2E), vT + 10))
    e('v_mov_b32 v%d, v%d' % (vT + 13, vT + 12))
    e('v_mov_b32 v%d, v%d' % (vT + 11, vT + 10))
    e('v_lshl_add_u32 v%d, v%d, 4, v%d' % (b_, a_, b_))
    e('s_lshl_b32 s%d, s%d, 10' % (sSS, sWave))
    e('s_add_u32 s%d, s%d, %d' % (sSS, sSS, RS))
    e('v_lshlrev_b32 v%d, 4, v%d' % (b_, b_))
    e('v_add_u32 v%d, s%d, v%d' % (b_, sSS, b_))
    e('ds_write_b128 v%d, %s' % (b_, vr(vT + 10, 4)))
    stat_calc = [l.strip() for l in e.lines]
    if diag:
        stamp(k, 4)

    vN, vQ, vA1, vA2, vA3, vR1, vR2 = vT, vT + 1, vT + 2, vT + 3, vT + 4, vT + 5, vT + 6
    vC = vT + 8
    vX = MB + 0
    assert vC % 2 == 0 and vX % 2 == 0
    vY = vT + 14

    setup = K('x')
    e = setup
    e('v_and_b32 v%d, 15, v%d' % (vN, vLane))
    e('v_lshrrev_b32 v%d, 4, v%d' % (vQ, vLane))
    e('s_mul_i32 s%d, s%d, 14' % (sT, sCT))
    e('s_mul_i32 s%d, s%d, 7' % (sT + 4, sT + 2))
    e('s_add_u32 s%d, s%d, s%d' % (sT, sT, sT + 4))
    e('s_lshl_b32 s%d, s%d, 1' % (sT + 5, sRT))
    e('s_add_u32 s%d, s%d, s%d' % (sT + 5, sT + 5, sT + 3))
    e('s_mul_i32 s%d, s%d, %d' % (sT + 5, sT + 5, 112 * 8192))

    def chunk_addr(dst, vfc_off, vtb_off):
        e('v_add_u32 v%d, s%d, v%d' % (vY, sT, vfc_off))
        e('v_lshrrev_b32 v%d, 2, v%d' % (vY + 1, vY))
        e('v_lshlrev_b32 v%d, 13, v%d' % (vY + 1, vY + 1))
        e('v_and_b32 v%d, 3, v%d' % (vY, vY))
        e('v_lshl_add_u32 v%d, v%d, 4, v%d' % (vY, vY, vN))
        e('v_lshl_add_u32 v%d, v%d, 4, v%d' % (vY, vY, vY + 1))
        if vtb_off is not None:
            e('v_lshl_add_u32 v%d, v%d, 10, v%d' % (vY, vtb_off, vY))
        e('v_add_u32 v%d, s%d, v%d' % (dst, sT + 5, vY))

    e('v_and_b32 v%d, 1, v%d' % (vR1, vQ))
    e('v_lshrrev_b32 v%d, 1, v%d' % (vR2, vQ))
    e('v_lshl_add_u32 v%d, v%d, 1, v%d' % (vC, vR1, vR2))
    chunk_addr(vA1, vC, None)
    e('v_add_u32 v%d, 4, v%d' % (vC, vR2))
    chunk_addr(vA2, vC, vR1)
    e('v_mov_b32 v%d, 6' % vC)
    chunk_addr(vA3, vC, vQ)
    e('s_mul_i32 s%d, s%d, %d' % (sT + 4, sT + 3, TB * 256))
    e('s_add_u32 s%d, s%d, %d' % (sT + 4, sT + 4, RS))
    e('v_lshlrev_b32 v%d, 4, v%d' % (vY, vN))
    e('v_lshl_add_u32 v%d, v%d, 8, v%d' % (vR2, vR1, vY))
    e('v_add_u32 v%d, s%d, v%d' % (vR1, sT + 4, vY))
    e('v_add_u32 v%d, s%d, v%d' % (vR2, sT + 4, vR2))
    setup_lines = [l.strip() for l in setup.lines]

    def epi_pair(jp):
        e = K('x')

        def swiglu(G, U, C):
            X = vX
            e('v_pk_mul_f32 %s, %s, %s' % (vr(X, 2), vr(G, 2), vr(C, 2)))
            e('v_pk_mul_f32 %s, %s, %s' % (vr(X + 2, 2), vr(G + 2, 2), vr(C, 2)))
            for i in range(4):
                e('v_exp_f32 v%d, v%d' % (X + i, X + i))
            e('v_pk_mul_f32 %s, %s, %s' % (vr(G, 2), vr(G, 2), vr(U, 2)))
            e('v_pk_fma_f32 %s, %s, %s, %s' % (vr(X, 2), vr(X, 2), vr(C + 2, 2), vr(C + 2, 2)))
            e('v_pk_fma_f32 %s, %s, %s, %s' % (vr(X + 2, 2), vr(X + 2, 2), vr(C + 2, 2), vr(C + 2, 2)))
            for i in range(4):
                e('v_rcp_f32 v%d, v%d' % (X + i, X + i))
            e('v_pk_mul_f32 %s, %s, %s' % (vr(G + 2, 2), vr(G + 2, 2), vr(U + 2, 2)))
            e('v_pk_mul_f32 %s, %s, %s' % (vr(G, 2), vr(G, 2), vr(X, 2)))
            e('v_pk_mul_f32 %s, %s, %s' % (vr(G + 2, 2), vr(G + 2, 2), vr(X + 2, 2)))

        def store(data, va, j):
            so = '0' if j < 4 else 's%d' % s4k
            e('buffer_store_dwordx4 %s, v%d, s[%d:%d], %s offen offset:%d %s' % (vr(data, 4), va, RO, RO + 3, so, 1024 * (j % 4), stflag))

        CC = [MB + 4, MB + 8, vC]
        e('ds_read_b128 %s, v%d offset:%d' % (vr(CC[0], 4), vR1, 256 * jp))
        e('ds_read_b128 %s, v%d offset:%d' % (vr(CC[1], 4), vR1, 256 * (jp + 1)))
        e('ds_read_b128 %s, v%d offset:%d' % (vr(CC[2], 4), vR2, 256 * jp))
        A6, B6 = acc(jp, 6), acc(jp + 1, 6)
        e('s_waitcnt lgkmcnt(0)')
        for dj in range(2):
            j = jp + dj
            for b in range(3):
                swiglu(acc(j, b), acc(j, b + 3), CC[dj])
            if dj == 0:
                for i in range(4):
                    e('v_permlane16_swap_b32 v%d, v%d' % (A6 + i, B6 + i))
            P = acc(j, 3)
            e('v_cvt_pk_bf16_f32 v%d, v%d, v%d' % (P, acc(j, 0), acc(j, 0) + 1))
            e('v_cvt_pk_bf16_f32 v%d, v%d, v%d' % (P + 1, acc(j, 0) + 2, acc(j, 0) + 3))
            e('v_cvt_pk_bf16_f32 v%d, v%d, v%d' % (P + 2, acc(j, 1), acc(j, 1) + 1))
            e('v_cvt_pk_bf16_f32 v%d, v%d, v%d' % (P + 3, acc(j, 1) + 2, acc(j, 1) + 3))
            P2 = acc(jp, 4) + 2 * dj
            e('v_cvt_pk_bf16_f32 v%d, v%d, v%d' % (P2, acc(j, 2), acc(j, 2) + 1))
            e('v_cvt_pk_bf16_f32 v%d, v%d, v%d' % (P2 + 1, acc(j, 2) + 2, acc(j, 2) + 3))
            e('v_permlane16_swap_b32 v%d, v%d' % (P, P + 2))
            e('v_permlane16_swap_b32 v%d, v%d' % (P + 1, P + 3))
            store(P, vA1, j)
        swiglu(A6, B6, CC[2])
        P2 = acc(jp, 4)
        e('v_permlane16_swap_b32 v%d, v%d' % (P2, P2 + 2))
        e('v_permlane16_swap_b32 v%d, v%d' % (P2 + 1, P2 + 3))
        store(P2, vA2, jp)
        jq = jp & ~3
        P3 = acc(jq, 5) + 2 * ((jp >> 1) & 1)
        e('v_cvt_pk_bf16_f32 v%d, v%d, v%d' % (P3, A6, A6 + 1))
        e('v_cvt_pk_bf16_f32 v%d, v%d, v%d' % (P3 + 1, A6 + 2, A6 + 3))
        if jp & 2:
            P3 = acc(jq, 5)
            e('s_nop 1')
            e('v_permlane32_swap_b32 v%d, v%d' % (P3, P3 + 2))
            e('v_permlane32_swap_b32 v%d, v%d' % (P3 + 1, P3 + 3))
            store(P3, vA3, jq)
        return [l.strip() for l in e.lines]

    plan = {s: [] for s in range(32)}
    nxt = 2
    for s in range(32):
        while nxt <= min(31, s + LA) and len(plan[s]) < 2:
            plan[s].append(nxt)
            nxt += 1
    oplog = [0] * D + [1] * D
    pf_at = [pf_from + 3 * n for n in range(pf_wd)]

    def mf(s, j, b):
        a = acc(j, b)
        c = '0' if s == 0 else vr(a, 4)
        return 'v_mfma_f32_16x16x32_bf16 %s, %s, %s, %s' % (vr(a, 4), ar(fW(s & 1, b), 4), ar(fT(s & 1, j), 4), c)

    for s in range(32):
        head = 0
        if s == 0:
            k('s_waitcnt lgkmcnt(0)')
            head = 20
            for i in range(head):
                k(mf(0, i // 7, i % 7))
            k('s_waitcnt vmcnt(0)')
            k('s_barrier')
        elif s < 31:
            need = s + 1
            last = len(oplog) - 1 - oplog[::-1].index(need)
            k('s_waitcnt vmcnt(%d) lgkmcnt(0)' % min(63, len(oplog) - 1 - last))
            k('s_barrier')
        else:
            k('s_waitcnt lgkmcnt(0)')
        if diag and s == 1:
            stamp(k, 5)
        if order == 'jb' or s in (0, 31):
            main = [mf(s, j, b) for j in range(TB) for b in range(7)][head:]
        elif order == 'bj':
            main = [mf(s, j, b) for b in range(7) for j in range(TB)]
        elif order == 'chain':
            js = range(0, 4) if s % 2 else range(4, 8)
            main = [mf(max(1, s + d), j, b) for j in js for b in range(7) for d in range(2)]
        elif order == 'same':
            main = [mf(s, j, 0) for j in range(TB) for b in range(7)]
        elif order == 'snake':
            main = [mf(s, j, b if j % 2 == 0 else 6 - b) for j in range(TB) for b in range(7)]
        n = len(main)
        slots = [[] for _ in range(n)]
        rg = read_groups(s + 1) if s < 31 and not (nolds and s > 1) else []
        dg = []
        for st in plan[s]:
            if not nodma or st < 5:
                gg = dma_groups(st)
                dg += gg
            elif nodma == 'w':
                dg += [dma_groups(st)[0][:-1]] + dma_groups(st)[4:]
            elif nodma == 't':
                dg += dma_groups(st)[:4]
            oplog.extend([st] * D)
        if pf_wd and s in pf_at:
            n_ = pf_at.index(s)
            dg.append(['s_mov_b32 s%d, 0x%x' % (sT + 6, n_ * 1024 * 2048),
                       'buffer_load_dword v%d, v%d, s[%d:%d], s%d offen' % (vT + 7, vPF, RP, RP + 3, sT + 6)])
            oplog.append('P')
        if s == 2:
            dg += stat_loads
            oplog.extend(['S'] * 4)
        if s == 6:
            for i, l in enumerate(stat_calc):
                slots[min(n - 1, int(i * (n - 1) / len(stat_calc)))].append([l])
        if s in ct:
            dg.append([code_touch(56, vT + 9, vT + 7)])
            oplog.append('C')
        if cp and cp <= s < cp + 7:
            n_ = s - cp
            dg.append(['s_mov_b32 s%d, 0x%x' % (sT + 6, n_ * 65536),
                       'buffer_load_dwordx4 %s, v%d, s[%d:%d], s%d offen' % (ar(aCP + 4 * n_, 4), vPF, RP, RP + 3, sT + 6)])
            oplog.append('P')
        if cp and cp + cpd <= s < cp + cpd + 7:
            n_ = s - cp - cpd
            dg.append(['s_mov_b32 s%d, 0x%x' % (sT + 7, n_ * 4096),
                       'buffer_store_dwordx4 %s, v%d, s[%d:%d], s%d offen %s' % (ar(aCP + 4 * n_, 4), vT + 10, RWD, RWD + 3, sT + 7, cpflag)])
            oplog.append('X')
        if s in pfx:
            n_ = pfx.index(s)
            dg.append(['s_bfe_u32 s%d, s2, 0x20001' % (sT + 6), 's_add_u32 s%d, s%d, %d' % (sT + 6, sT + 6, n_), 's_and_b32 s%d, s%d, 3' % (sT + 6, sT + 6),
                       's_lshl_b32 s%d, s%d, 21' % (sT + 6, sT + 6),
                       'buffer_load_dword v%d, v%d, s[%d:%d], s%d offen' % (vT + 7, vPF, RP, RP + 3, sT + 6)])
            oplog.append('P')
        if pf1 and s == pf1:
            dg.append(['buffer_load_dword v%d, v%d, s[%d:%d], 0 offen' % (vT + 7, vPF, RP, RP + 3)])
            oplog.append('P')
        for i, g in enumerate(rg):
            slots[int(n * rd_start + i * n * (rd_end - rd_start) / len(rg))].append(g)
        for i, g in enumerate(dg):
            slots[min(n - 1, int(n * dma_pos[0] + (i + 0.5) * n * (dma_pos[1] - dma_pos[0]) / len(dg)))].append(g)
        if place == 'excl' and 0 < len(dg) <= 11 and s not in (6, 30):
            slots = [[] for _ in range(n)]
            dpos = [int((i + 0.5) * n / len(dg)) for i in range(len(dg))]
            for i, g_ in enumerate(dg):
                j_ = max(i_ for i_, l_ in enumerate(g_) if 'buffer_' in l_)
                pre_ = [l_ for l_ in g_[:j_] if 'exec' not in l_ and 's_nop 0' != l_]
                rest_ = [l_ for l_ in g_[:j_] if 'exec' in l_] + g_[j_:]
                slots[dpos[i] - 1].append(pre_)
                slots[dpos[i]].append(rest_)
            free = [i for i in range(n) if i not in dpos and (i - 1) not in dpos and (i + 1) not in dpos]
            for i, g_ in enumerate(rg):
                slots[free[min(len(free) - 1, int(i * len(free) * rd_end / len(rg)))]].append(g_)
        if place == 'pair':
            slots = [[] for _ in range(n)]
            for i, g_ in enumerate(rg):
                slots[int(i * n * rd_end / len(rg))].append(g_)
            for i, g_ in enumerate(dg):
                slots[min(n - 1, int(((i // 2) + 0.5) * n / ((len(dg) + 1) // 2)))].append(g_)
            if s == 6:
                for i, l in enumerate(stat_calc):
                    slots[min(n - 1, int(i * (n - 1) / len(stat_calc)))].append([l])
        if s == 30:
            for i, l in enumerate(setup_lines):
                slots[min(n - 1, int(n * 0.2 + i * n * 0.78 / len(setup_lines)))].append([l])
        if s == 31 and overlap:
            ep = epi_pair(0) + epi_pair(2)
            n0 = len(epi_pair(0))
            pos = 0
            for i in range(n):
                k(main[i])
                if i >= 14 + 3:
                    lim = n0 if i < 28 + 8 else len(ep)
                    for _ in range(2):
                        if pos < lim:
                            k(ep[pos])
                            pos += 1
            if diag:
                stamp(k, 6)
            for l in ep[pos:]:
                k(l)
            for jp in (4, 6):
                for l in epi_pair(jp):
                    k(l)
        else:
            for i in range(n):
                k(main[i])
                for g in slots[i]:
                    for l in g:
                        k(l)
    if not overlap:
        if diag:
            stamp(k, 6)
        k('s_nop 7')
        for jp in range(0, TB, 2):
            for l in epi_pair(jp):
                k(l)
    if diag:
        stamp_flush(k, kidx, 8, sWS, 48, 2, 0)
    k.label(done)
    k('s_endpgm')
    ao = MB + 32
    txt = k.text(ao + 2 * FSET + 16 + 28, ao)
    return dict(name=name, text=txt, grid=256, block=256, lds=LDS, nst=8)
```

```python
from asmlib import *
from kc import f32hex, LOG2E


def gen_kc(diag=False, kidx=2, name='kc_kernel', LA=4, rot=8, rd_end=0.7, pf_wd=0, stflag='sc1', tokflag='', bar2=False,
           overlap=True, nodma=False, prio=False, xmap='8x4', pf_from=20, lead=0, S0=8, ndes=1, pf1=0, ct=(), rd_start=0.0, dma_pos=(0.0, 1.0), order='jb', nolds=False, place='', addtid=False, pfs=(26,), vper=3, scalar=True):
    k = K(name)
    NW, NS, TB = 4, 5, 8
    NACC = TB * 7 * 4
    MB = NACC
    SLOT = 16384 + 7168 + 16 + 7168
    GOFF = 16384
    UOFF = 7184
    RS = NS * SLOT
    LDS = RS + 2048
    TD, WD = 4, 4
    D = TD + WD
    FSET = (TB + 7) * 4
    vTok = [MB + 0, MB + 1, MB + 2]
    vW = [MB + 3, MB + 4, MB + 5]
    vW6 = [MB + 6, MB + 7, MB + 8]
    vDT = MB + 9
    vDW = [MB + 10 + i for i in range(4)]
    vLane = MB + 14
    vPF = MB + 15
    vTab = MB + 31
    vT = MB + 16
    sWS, sWave, sRT, sCT, sTO, sWO, sRho, sMT, sMW = 4, 28, 29, 30, 31, 32, 33, 36, 37
    sEx = 38
    sSS = 35
    s4k = 40
    sT = 41
    RT, RW, RO, RSS, RP = 12, 16, 20, 24, 52

    def acc(j, b):
        return (j * 7 + b) * 4

    def fT(s, j):
        return s * FSET + j * 4

    def fW(s, b):
        return s * FSET + TB * 4 + b * 4

    done = k.newlabel('done')
    k('s_cmp_ge_u32 s2, 256')
    k('s_cbranch_scc1 %s' % done)
    if diag:
        stamp(k, 0)
    k('s_load_dwordx4 s[8:11], s[0:1], %d' % KARG['wg'])
    k('s_load_dwordx2 s[4:5], s[0:1], %d' % KARG['ws'])
    k('s_load_dwordx2 s[6:7], s[0:1], %d' % KARG['wd'])
    k('v_and_b32 v%d, 63, v0' % vLane)
    k('v_lshrrev_b32 v%d, 6, v0' % vT)
    k('v_mov_b32 v%d, v0' % (vT + 8))
    k('v_readfirstlane_b32 s%d, v%d' % (sWave, vT))
    k('s_and_b32 s%d, s2, 7' % sT)
    k('s_lshr_b32 s%d, s2, 3' % (sT + 1))
    if xmap == '8x4':
        k('s_lshr_b32 s%d, s%d, 2' % (sRT, sT + 1))
        k('s_and_b32 s%d, s%d, 3' % (sT + 1, sT + 1))
        k('s_lshl_b32 s%d, s%d, 2' % (sT, sT))
        k('s_add_u32 s%d, s%d, s%d' % (sCT, sT, sT + 1))
        k('s_lshl_b32 s%d, s%d, 1' % (sRho, sT + 1))
        k('s_add_u32 s%d, s%d, s%d' % (sRho, sRho, sRT))
    else:
        k('s_and_b32 s%d, s%d, 6' % (sRT, sT))
        k('s_lshr_b32 s%d, s%d, 4' % (sCT, sT + 1))
        k('s_add_u32 s%d, s%d, s%d' % (sRT, sRT, sCT))
        k('s_lshl_b32 s%d, s%d, 2' % (sRho, sCT))
        k('s_and_b32 s%d, s%d, 1' % (sCT, sT))
        k('s_lshl_b32 s%d, s%d, 4' % (sCT, sCT))
        k('s_and_b32 s%d, s%d, 15' % (sT + 1, sT + 1))
        k('s_add_u32 s%d, s%d, s%d' % (sCT, sCT, sT + 1))
        k('s_lshr_b32 s%d, s%d, 1' % (sT, sT))
        k('s_add_u32 s%d, s%d, s%d' % (sRho, sRho, sT))
        k('s_add_u32 s%d, s%d, s%d' % (sRho, sRho, sT + 1))
    if lead:
        k('s_and_b32 s%d, s%d, 7' % (sRho, sRho))
        order_table(k, 32, S0, lead, ndes, sRho, 60, vLane, vT + 1, vTab)
    k('s_and_b32 s%d, s%d, 1' % (sT + 2, sWave))
    k('s_lshr_b32 s%d, s%d, 1' % (sT + 3, sWave))
    k('v_lshlrev_b32 v%d, 4, v%d' % (vT, vLane))
    k('s_mul_i32 s%d, s%d, %d' % (sMT, sWave, TD * 1024))
    k('v_add_u32 v%d, s%d, v%d' % (vDT, sMT, vT))
    k('s_mul_i32 s%d, s%d, 16' % (sT + 4, sT + 3))
    k('s_mul_i32 s%d, s%d, 224' % (sT + 5, sCT))
    for i in range(WD):
        k('v_add_u32 v%d, %d, v%d' % (vT + 1, 64 * i, vLane))
        k('v_mul_u32_u24 v%d, 4682, v%d' % (vT + 2, vT + 1))
        k('v_lshrrev_b32 v%d, 16, v%d' % (vT + 2, vT + 2))
        k('v_mul_u32_u24 v%d, 14, v%d' % (vT + 3, vT + 2))
        k('v_sub_u32 v%d, v%d, v%d' % (vT + 3, vT + 1, vT + 3))
        k('v_add_u32 v%d, s%d, v%d' % (vT + 2, sT + 4, vT + 2))
        k('v_and_b32 v%d, 3, v%d' % (vT + 4, vT + 2))
        k('v_bfe_u32 v%d, v%d, 2, 2' % (vT + 5, vT + 2))
        k('v_lshl_add_u32 v%d, v%d, 3, v%d' % (vT + 4, vT + 5, vT + 4))
        k('v_bfe_u32 v%d, v%d, 4, 1' % (vT + 5, vT + 2))
        k('v_lshl_add_u32 v%d, v%d, 2, v%d' % (vT + 4, vT + 5, vT + 4))
        k('v_mul_u32_u24 v%d, 7168, v%d' % (vT + 4, vT + 4))
        k('v_lshl_add_u32 v%d, v%d, 4, v%d' % (vT + 4, vT + 3, vT + 4))
        k('v_add_u32 v%d, s%d, v%d' % (vT + 4, sT + 5, vT + 4))
        k('v_add_u32 v%d, %d, v%d' % (vDW[i], 4096 - 1024 * i, vT + 4))
    k('s_mul_i32 s%d, s%d, %d' % (sMW, sT + 2, UOFF))
    k('s_mul_i32 s%d, s%d, %d' % (sT + 4, sT + 3, 16 * 224))
    k('s_add_u32 s%d, s%d, s%d' % (sMW, sMW, sT + 4))
    k('s_add_u32 s%d, s%d, %d' % (sMW, sMW, GOFF))
    k('s_mov_b32 s%d, -1' % sEx)
    k('s_mov_b32 s%d, 0' % (sEx + 1))
    k('s_movk_i32 s%d, 0x1000' % s4k)
    k('s_lshl_b32 s%d, s%d, 19' % (sT, sRT))
    k('s_add_u32 s%d, s%d, 0x%x' % (sT, sT, WS_HC))
    k('s_waitcnt lgkmcnt(0)')
    if diag:
        stamp(k, 1)
    k('s_add_u32 s%d, s4, s%d' % (RT, sT))
    k('s_addc_u32 s%d, s5, 0' % (RT + 1))
    if addtid:
        k('s_add_u32 s%d, s%d, s%d' % (RT, RT, sMT))
        k('s_addc_u32 s%d, s%d, 0' % (RT + 1, RT + 1))
        k('s_or_b32 s%d, s%d, 0x100000' % (RT + 1, RT + 1))
        k('s_mov_b32 s%d, 0x8000' % (RT + 2))
        k('s_mov_b32 s%d, 0x820000' % (RT + 3))
    else:
        k('s_mov_b32 s%d, 0x80000' % (RT + 2))
        k('s_mov_b32 s%d, 0x20000' % (RT + 3))
    k('s_cmp_eq_u32 s%d, 0' % (sT + 2))
    k('s_cselect_b32 s%d, s8, s10' % RW)
    k('s_cselect_b32 s%d, s9, s11' % (RW + 1))
    k('s_sub_u32 s%d, s%d, 0x1000' % (RW, RW))
    k('s_subb_u32 s%d, s%d, 0' % (RW + 1, RW + 1))
    k('s_mov_b32 s%d, 0x%x' % (RW + 2, 1024 * 7168 + 4096))
    k('s_mov_b32 s%d, 0x20000' % (RW + 3))

    def dma_groups(st):
        slot = (st % NS) * SLOT
        g = []
        if lead:
            pre = ['v_readlane_b32 s%d, v%d, %d' % (sTO, vTab, st), 's_nop 1',
                   's_mul_i32 s%d, s%d, %d' % (sWO, sTO, 32 * 7168), 's_lshl_b32 s%d, s%d, 14' % (sTO, sTO)]
        elif rot:
            pre = ['s_add_u32 s%d, s%d, %d' % (sTO, sRho, st % rot), 's_and_b32 s%d, s%d, %d' % (sTO, sTO, rot - 1),
                   's_add_u32 s%d, s%d, %d' % (sTO, sTO, st - st % rot),
                   's_mul_i32 s%d, s%d, %d' % (sWO, sTO, 32 * 7168), 's_lshl_b32 s%d, s%d, 14' % (sTO, sTO)]
        else:
            pre = ['s_mov_b32 s%d, 0x%x' % (sTO, st << 14), 's_mov_b32 s%d, 0x%x' % (sWO, st * 32 * 7168)]
        for i in range(WD):
            ins = 'buffer_load_dwordx4 v%d, s[%d:%d], s%d offen offset:%d lds' % (vDW[i], RW, RW + 3, sWO, 1024 * i)
            if i == 0:
                g.append(['s_add_u32 m0, s%d, %d' % (sMW, slot)] + pre + [ins])
            elif i == WD - 1:
                g.append(['s_mov_b64 exec, s[%d:%d]' % (sEx, sEx + 1), ins, 's_mov_b64 exec, -1'])
            else:
                g.append([ins])
        for i in range(TD):
            ins = 'buffer_load_dwordx4 v%d, s[%d:%d], s%d offen offset:%d %s lds' % (vDT, RT, RT + 3, sTO, 1024 * i, tokflag)
            if addtid:
                ins = 'buffer_load_dwordx4 off, s[%d:%d], s%d offset:%d lds' % (RT, RT + 3, sTO, 1024 * i)
            if i == 0:
                g.append(['s_add_u32 m0, s%d, %d' % (sMT, slot), 's_nop 0', ins])
            else:
                g.append([ins])
        return g

    def read_groups(st):
        s = st & 1
        sl = st % NS
        bi, so = sl >> 1, (sl & 1) * SLOT
        g = [['ds_read_b128 %s, v%d offset:%d' % (ar(fT(s, 0), 4), vTok[bi], so)]]
        for b in range(7):
            for hh in range(2):
                if b < 6:
                    off = hh * 3584 + 32 * (b % 3) + (UOFF if b >= 3 else 0)
                    g.append(['ds_read_b64_tr_b16 %s, v%d offset:%d' % (ar(fW(s, b) + 2 * hh, 2), vW[bi], so + off)])
                else:
                    g.append(['ds_read_b64_tr_b16 %s, v%d offset:%d' % (ar(fW(s, b) + 2 * hh, 2), vW6[bi], so + hh * 3584)])
        for j in range(1, TB):
            g.append(['ds_read_b128 %s, v%d offset:%d' % (ar(fT(s, j), 4), vTok[bi], so + 1024 * j)])
        return g

    def emit(groups):
        for grp in groups:
            for l in grp:
                k(l)

    emit(dma_groups(0))
    emit(dma_groups(1))
    if diag:
        stamp(k, 2)
    srd(k, RO, sWS, 2048 * 3584 * 2, WS_ACT)
    srd(k, RP, 6, 3584 * 2048)
    k('s_mul_i32 s%d, s%d, %d' % (sT + 4, sT + 3, TB * 1024))
    k('v_add_u32 v%d, s%d, v%d' % (vTok[0], sT + 4, vT))
    k('v_lshrrev_b32 v%d, 2, v%d' % (vT + 1, vLane))
    k('v_mul_u32_u24 v%d, 224, v%d' % (vT + 1, vT + 1))
    k('s_mul_i32 s%d, s%d, 112' % (sT + 4, sT + 2))
    k('s_add_u32 s%d, s%d, %d' % (sT + 4, sT + 4, GOFF))
    k('v_add_u32 v%d, s%d, v%d' % (vT + 1, sT + 4, vT + 1))
    k('v_and_b32 v%d, 3, v%d' % (vT + 2, vLane))
    k('v_lshl_add_u32 v%d, v%d, 3, v%d' % (vW[0], vT + 2, vT + 1))
    k('v_lshrrev_b32 v%d, 1, v%d' % (vT + 3, vT + 2))
    k('v_lshl_add_u32 v%d, v%d, 3, v%d' % (vW6[0], vT + 3, vT + 1))
    k('v_and_b32 v%d, 1, v%d' % (vT + 3, vT + 2))
    k('v_mul_u32_u24 v%d, %d, v%d' % (vT + 3, UOFF, vT + 3))
    k('v_add3_u32 v%d, v%d, v%d, %d' % (vW6[0], vW6[0], vT + 3, 48))
    k('v_add_u32 v%d, 48, v%d' % (vW6[0], vW6[0]))
    for bi in (1, 2):
        for v in (vTok, vW, vW6):
            k('v_add_u32 v%d, %d, v%d' % (v[bi], 2 * bi * SLOT, v[0]))
    if pf_wd:
        k('s_lshr_b32 s%d, s2, 3' % (sT + 4))
        k('s_lshl_b32 s%d, s%d, 2' % (sT + 4, sT + 4))
        k('s_add_u32 s%d, s%d, s%d' % (sT + 4, sT + 4, sWave))
        k('s_lshl_b32 s%d, s%d, 14' % (sT + 4, sT + 4))
        k('s_and_b32 s%d, s2, 1' % (sT + 5))
        k('s_mul_i32 s%d, s%d, %d' % (sT + 5, sT + 5, 1024 + (1792 * 2048 if xmap != '8x4' else 0)))
        k('s_add_u32 s%d, s%d, s%d' % (sT + 4, sT + 4, sT + 5))
        k('v_lshrrev_b32 v%d, 3, v%d' % (vT + 1, vLane))
        k('v_lshlrev_b32 v%d, 11, v%d' % (vT + 1, vT + 1))
        k('v_and_b32 v%d, 7, v%d' % (vT + 2, vLane))
        k('v_lshl_add_u32 v%d, v%d, 7, v%d' % (vT + 1, vT + 2, vT + 1))
        k('v_add_u32 v%d, s%d, v%d' % (vPF, sT + 4, vT + 1))
    if ct:
        code_touch_setup(k, 56, sWave, vLane, sT + 4, vT + 9)
    NL = 56 // len(pfs) if pfs else 0
    if pfs:
        assert NL * len(pfs) == 56
        k('v_lshlrev_b32 v%d, 7, v%d' % (vT + 1, vLane))
        k('v_mov_b32 v%d, 0x40000000' % (vT + 2))
        k('v_cmp_gt_u32 vcc, %d, v%d' % (NL, vLane))
        k('s_lshl_b32 s%d, s2, 2' % (sT + 4))
        k('s_add_u32 s%d, s%d, s%d' % (sT + 4, sT + 4, sWave))
        k('s_mul_i32 s%d, s%d, 7168' % (sT + 4, sT + 4))
        k('v_cndmask_b32 v%d, v%d, v%d, vcc' % (vT + 1, vT + 2, vT + 1))
        k('v_add_u32 v%d, s%d, v%d' % (vPF, sT + 4, vT + 1))
    k('s_waitcnt vmcnt(%d)' % D)
    if diag:
        stamp(k, 3)
    k('s_barrier')
    emit(read_groups(0))
    srd(k, RSS, sWS, 2048 * 64, WS_SS)
    aS = 2 * FSET
    k('s_lshl_b32 s%d, s%d, 14' % (sSS, sRT))
    k('s_lshl_b32 s%d, s%d, 12' % (sT + 4, sWave))
    k('s_add_u32 s%d, s%d, s%d' % (sSS, sSS, sT + 4))
    stat_loads = [['buffer_load_dwordx4 %s, v%d, s[%d:%d], s%d offen offset:%d' % (ar(aS + 4 * i, 4), vT, RSS, RSS + 3, sSS, 1024 * i)] for i in range(4)]
    e = K('x')
    a_, b_ = vT + 1, vT + 2
    R4 = [vT + 3, vT + 4, vT + 5, vT + 6]
    for i in range(4):
        e('v_accvgpr_read_b32 v%d, a%d' % (R4[i], aS + 4 * i))
        e('v_accvgpr_read_b32 v%d, a%d' % (a_, aS + 4 * i + 1))
        e('v_accvgpr_read_b32 v%d, a%d' % (b_, aS + 4 * i + 2))
        e('v_add_f32 v%d, v%d, v%d' % (R4[i], R4[i], a_))
        e('v_accvgpr_read_b32 v%d, a%d' % (a_, aS + 4 * i + 3))
        e('v_add_f32 v%d, v%d, v%d' % (R4[i], R4[i], b_))
        e('v_add_f32 v%d, v%d, v%d' % (R4[i], R4[i], a_))
    e('v_and_b32 v%d, 3, v%d' % (a_, vLane))
    e('s_nop 0')
    for mode in ('quad_perm:[1,0,3,2]', 'quad_perm:[2,3,0,1]'):
        for i in range(4):
            e('v_add_f32_dpp v%d, v%d, v%d %s row_mask:0xf bank_mask:0xf' % (R4[i], R4[i], R4[i], mode))
    for i in range(1, 4):
        e('v_cmp_eq_u32 vcc, %d, v%d' % (i, a_))
        e('s_nop 1')
        e('v_cndmask_b32 v%d, v%d, v%d, vcc' % (R4[0], R4[0], R4[i]))
    V = R4[0]
    e('v_mul_f32 v%d, %s, v%d' % (V, f32hex(1.0 / 1024), V))
    e('v_max_f32 v%d, 0, v%d' % (V, V))
    e('v_cvt_pk_bf16_f32 v%d, v%d, v%d' % (V, V, V))
    e('v_lshlrev_b32 v%d, 16, v%d' % (V, V))
    e('v_add_f32 v%d, %s, v%d' % (V, f32hex(1e-5), V))
    e('v_cvt_pk_bf16_f32 v%d, v%d, v%d' % (V, V, V))
    e('v_lshlrev_b32 v%d, 16, v%d' % (V, V))
    e('v_sqrt_f32 v%d, v%d' % (V, V))
    e('v_lshrrev_b32 v%d, 2, v%d' % (b_, vLane))
    e('v_cvt_pk_bf16_f32 v%d, v%d, v%d' % (V, V, V))
    e('v_lshlrev_b32 v%d, 16, v%d' % (V, V))
    e('v_rcp_f32 v%d, v%d' % (vT + 4, V))
    e('v_mul_f32 v%d, v%d, v%d' % (vT + 5, V, V))
    e('v_mul_f32 v%d, %s, v%d' % (vT + 4, f32hex(-LOG2E), vT + 4))
    e('v_lshl_add_u32 v%d, v%d, 4, v%d' % (b_, a_, b_))
    e('s_lshl_b32 s%d, s%d, 9' % (sSS, sWave))
    e('s_add_u32 s%d, s%d, %d' % (sSS, sSS, RS))
    e('v_lshlrev_b32 v%d, 3, v%d' % (b_, b_))
    e('v_add_u32 v%d, s%d, v%d' % (b_, sSS, b_))
    e('ds_write_b64 v%d, %s' % (b_, vr(vT + 4, 2)))
    stat_calc = [l.strip() for l in e.lines]
    if diag:
        stamp(k, 4)

    vN, vQ, vA1, vA2, vA3, vR1, vR2 = vT, vT + 1, vT + 2, vT + 3, vT + 4, vT + 5, vT + 6
    vC = vT + 8
    vX = MB + 10
    assert vC % 2 == 0 and vX % 2 == 0
    vY = vT + 14

    setup = K('x')
    e = setup
    e('v_and_b32 v%d, 15, v%d' % (vN, vLane))
    e('v_lshrrev_b32 v%d, 4, v%d' % (vQ, vLane))
    e('s_mul_i32 s%d, s%d, 14' % (sT, sCT))
    e('s_mul_i32 s%d, s%d, 7' % (sT + 4, sT + 2))
    e('s_add_u32 s%d, s%d, s%d' % (sT, sT, sT + 4))
    e('s_lshl_b32 s%d, s%d, 1' % (sT + 5, sRT))
    e('s_add_u32 s%d, s%d, s%d' % (sT + 5, sT + 5, sT + 3))
    e('s_mul_i32 s%d, s%d, %d' % (sT + 5, sT + 5, 112 * 8192))

    def chunk_addr(dst, vfc_off, vtb_off):
        e('v_add_u32 v%d, s%d, v%d' % (vY, sT, vfc_off))
        e('v_lshrrev_b32 v%d, 2, v%d' % (vY + 1, vY))
        e('v_lshlrev_b32 v%d, 13, v%d' % (vY + 1, vY + 1))
        e('v_and_b32 v%d, 3, v%d' % (vY, vY))
        e('v_lshl_add_u32 v%d, v%d, 4, v%d' % (vY, vY, vN))
        e('v_lshl_add_u32 v%d, v%d, 4, v%d' % (vY, vY, vY + 1))
        if vtb_off is not None:
            e('v_lshl_add_u32 v%d, v%d, 10, v%d' % (vY, vtb_off, vY))
        e('v_add_u32 v%d, s%d, v%d' % (dst, sT + 5, vY))

    e('v_and_b32 v%d, 1, v%d' % (vR1, vQ))
    e('v_lshrrev_b32 v%d, 1, v%d' % (vR2, vQ))
    e('v_lshl_add_u32 v%d, v%d, 1, v%d' % (vC, vR1, vR2))
    chunk_addr(vA1, vC, None)
    e('v_add_u32 v%d, 4, v%d' % (vC, vR2))
    chunk_addr(vA2, vC, vR1)
    e('v_mov_b32 v%d, 6' % vC)
    chunk_addr(vA3, vC, vQ)
    e('s_mul_i32 s%d, s%d, %d' % (sT + 4, sT + 3, TB * 128))
    e('s_add_u32 s%d, s%d, %d' % (sT + 4, sT + 4, RS))
    e('v_lshlrev_b32 v%d, 3, v%d' % (vY, vN))
    e('v_lshl_add_u32 v%d, v%d, 7, v%d' % (vR2, vR1, vY))
    e('v_add_u32 v%d, s%d, v%d' % (vR1, sT + 4, vY))
    e('v_add_u32 v%d, s%d, v%d' % (vR2, sT + 4, vR2))
    setup_lines = [l.strip() for l in setup.lines]

    def epi_pair(jp, scalar=False):
        e = K('x')

        def swiglu(G, U, C):
            X = vX
            if scalar:
                for i in range(4):
                    e('v_mul_f32 v%d, v%d, v%d' % (X + i, G + i, C))
                for i in range(4):
                    e('v_exp_f32 v%d, v%d' % (X + i, X + i))
                    e('v_mul_f32 v%d, v%d, v%d' % (G + i, G + i, U + i))
                for i in range(4):
                    e('v_fma_f32 v%d, v%d, v%d, v%d' % (X + i, X + i, C + 1, C + 1))
                for i in range(4):
                    e('v_rcp_f32 v%d, v%d' % (X + i, X + i))
                e('s_nop 0')
                for i in range(4):
                    e('v_mul_f32 v%d, v%d, v%d' % (G + i, G + i, X + i))
                return
            e('v_pk_mul_f32 %s, %s, %s op_sel_hi:[1,0]' % (vr(X, 2), vr(G, 2), vr(C, 2)))
            e('v_pk_mul_f32 %s, %s, %s op_sel_hi:[1,0]' % (vr(X + 2, 2), vr(G + 2, 2), vr(C, 2)))
            for i in range(4):
                e('v_exp_f32 v%d, v%d' % (X + i, X + i))
            e('v_pk_mul_f32 %s, %s, %s' % (vr(G, 2), vr(G, 2), vr(U, 2)))
            e('v_pk_fma_f32 %s, %s, %s, %s op_sel:[0,1,1] op_sel_hi:[1,1,1]' % (vr(X, 2), vr(X, 2), vr(C, 2), vr(C, 2)))
            e('v_pk_fma_f32 %s, %s, %s, %s op_sel:[0,1,1] op_sel_hi:[1,1,1]' % (vr(X + 2, 2), vr(X + 2, 2), vr(C, 2), vr(C, 2)))
            for i in range(4):
                e('v_rcp_f32 v%d, v%d' % (X + i, X + i))
            e('v_pk_mul_f32 %s, %s, %s' % (vr(G + 2, 2), vr(G + 2, 2), vr(U + 2, 2)))
            e('v_pk_mul_f32 %s, %s, %s' % (vr(G, 2), vr(G, 2), vr(X, 2)))
            e('v_pk_mul_f32 %s, %s, %s' % (vr(G + 2, 2), vr(G + 2, 2), vr(X + 2, 2)))

        def store(data, va, j):
            so = '0' if j < 4 else 's%d' % s4k
            e('buffer_store_dwordx4 %s, v%d, s[%d:%d], %s offen offset:%d %s' % (vr(data, 4), va, RO, RO + 3, so, 1024 * (j % 4), stflag))

        A6, B6 = acc(jp, 6), acc(jp + 1, 6)
        for dj in range(2):
            j = jp + dj
            for b in range(3):
                swiglu(acc(j, b), acc(j, b + 3), vC + 2 * dj)
            if dj == 0:
                for i in range(4):
                    e('v_permlane16_swap_b32 v%d, v%d' % (A6 + i, B6 + i))
            P = acc(j, 3)
            e('v_cvt_pk_bf16_f32 v%d, v%d, v%d' % (P, acc(j, 0), acc(j, 0) + 1))
            e('v_cvt_pk_bf16_f32 v%d, v%d, v%d' % (P + 1, acc(j, 0) + 2, acc(j, 0) + 3))
            e('v_cvt_pk_bf16_f32 v%d, v%d, v%d' % (P + 2, acc(j, 1), acc(j, 1) + 1))
            e('v_cvt_pk_bf16_f32 v%d, v%d, v%d' % (P + 3, acc(j, 1) + 2, acc(j, 1) + 3))
            P2 = acc(jp, 4) + 2 * dj
            e('v_cvt_pk_bf16_f32 v%d, v%d, v%d' % (P2, acc(j, 2), acc(j, 2) + 1))
            e('v_cvt_pk_bf16_f32 v%d, v%d, v%d' % (P2 + 1, acc(j, 2) + 2, acc(j, 2) + 3))
            e('v_permlane16_swap_b32 v%d, v%d' % (P, P + 2))
            e('v_permlane16_swap_b32 v%d, v%d' % (P + 1, P + 3))
            store(P, vA1, j)
        swiglu(A6, B6, vC + 4)
        P2 = acc(jp, 4)
        e('v_permlane16_swap_b32 v%d, v%d' % (P2, P2 + 2))
        e('v_permlane16_swap_b32 v%d, v%d' % (P2 + 1, P2 + 3))
        store(P2, vA2, jp)
        jq = jp & ~3
        P3 = acc(jq, 5) + 2 * ((jp >> 1) & 1)
        e('v_cvt_pk_bf16_f32 v%d, v%d, v%d' % (P3, A6, A6 + 1))
        e('v_cvt_pk_bf16_f32 v%d, v%d, v%d' % (P3 + 1, A6 + 2, A6 + 3))
        if jp & 2:
            P3 = acc(jq, 5)
            e('s_nop 1')
            e('v_permlane32_swap_b32 v%d, v%d' % (P3, P3 + 2))
            e('v_permlane32_swap_b32 v%d, v%d' % (P3 + 1, P3 + 3))
            store(P3, vA3, jq)
        return [l.strip() for l in e.lines]

    def creads(jp):
        return ['ds_read_b64 %s, v%d offset:%d' % (vr(vC, 2), vR1, 128 * jp),
                'ds_read_b64 %s, v%d offset:%d' % (vr(vC + 2, 2), vR1, 128 * (jp + 1)),
                'ds_read_b64 %s, v%d offset:%d' % (vr(vC + 4, 2), vR2, 128 * jp)]

    T0 = 28
    plan = {s: [] for s in range(T0)}
    nxt = 2
    for s in range(T0):
        tgt = s + LA if s < 22 else s + 5
        while nxt <= min(31, tgt) and len(plan[s]) < 2:
            plan[s].append(nxt)
            nxt += 1
    assert nxt == 32
    oplog = [0] * D + [1] * D

    def mf(s, j, b):
        a = acc(j, b)
        c = '0' if s == 0 else vr(a, 4)
        return 'v_mfma_f32_16x16x32_bf16 %s, %s, %s, %s' % (vr(a, 4), ar(fW(s & 1, b), 4), ar(fT(s & 1, j), 4), c)

    def vm_wait(need):
        last = len(oplog) - 1 - oplog[::-1].index(need)
        return min(63, len(oplog) - 1 - last)

    def tW(st, b):
        return 120 + (st - T0) * 28 + 4 * b

    def tT(g, dj):
        return (g % 4) * 8 + 4 * dj

    def tail_reads(g):
        p_, st = g >> 2, T0 + (g & 3)
        sl = st % NS
        bi, so = sl >> 1, (sl & 1) * SLOT
        out = []
        for dj in range(2):
            out.append('ds_read_b128 %s, v%d offset:%d' % (ar(tT(g, dj), 4), vTok[bi], so + 1024 * (2 * p_ + dj)))
        if p_ == 0:
            for b in range(7):
                for hh in range(2):
                    if b < 6:
                        off = hh * 3584 + 32 * (b % 3) + (UOFF if b >= 3 else 0)
                        out.append('ds_read_b64_tr_b16 %s, v%d offset:%d' % (ar(tW(st, b) + 2 * hh, 2), vW[bi], so + off))
                    else:
                        out.append('ds_read_b64_tr_b16 %s, v%d offset:%d' % (ar(tW(st, b) + 2 * hh, 2), vW6[bi], so + hh * 3584))
        return out

    for s in range(T0):
        head = 0
        if s == 0:
            k('s_waitcnt lgkmcnt(0)')
            head = 20
            for i in range(head):
                k(mf(0, i // 7, i % 7))
            k('s_waitcnt vmcnt(0)')
            k('s_barrier')
        else:
            k('s_waitcnt vmcnt(%d) lgkmcnt(0)' % vm_wait(s + 1 if s < T0 - 1 else T0 + 1))
            k('s_barrier')
        if diag and s == 1:
            stamp(k, 5)
        if s == 0:
            main = [mf(s, j, b) for j in range(TB) for b in range(7)][head:]
        else:
            main = [mf(s, j, b if j % 2 == 0 else 6 - b) for j in range(TB) for b in range(7)]
        n = len(main)
        rg = read_groups(s + 1) if s < T0 - 1 else [[l] for l in tail_reads(0) + tail_reads(1)]
        dg = []
        for st in plan[s]:
            dg += dma_groups(st)
            oplog.extend([st] * D)
        if s == 2:
            dg += stat_loads
            oplog.extend(['S'] * 4)
        if s in ct:
            dg.append([code_touch(56, vT + 9, vT + 7)])
            oplog.append('C')
        if s in pfs:
            dg.append(['s_mov_b32 s%d, %d' % (sT + 6, pfs.index(s) * NL * 128),
                       'buffer_load_dword v%d, v%d, s[%d:%d], s%d offen' % (vT + 7, vPF, RP, RP + 3, sT + 6)])
            oplog.append('P')
        slots = [[] for _ in range(n)]
        if dg and len(dg) <= 11 and s != 6:
            dpos = [int((i + 0.5) * n / len(dg)) for i in range(len(dg))]
            for i, g_ in enumerate(dg):
                j_ = max(i_ for i_, l_ in enumerate(g_) if 'buffer_load' in l_)
                pre_ = [l_ for l_ in g_[:j_] if 'exec' not in l_ and 's_nop 0' != l_]
                rest_ = [l_ for l_ in g_[:j_] if 'exec' in l_] + g_[j_:]
                slots[dpos[i] - 1].append(pre_)
                slots[dpos[i]].append(rest_)
            free = [i for i in range(n) if i not in dpos and (i - 1) not in dpos and (i + 1) not in dpos]
            for i, g_ in enumerate(rg):
                slots[free[min(len(free) - 1, int(i * len(free) * rd_end / len(rg)))]].append(g_)
        else:
            if s == 6:
                for i, l in enumerate(stat_calc):
                    slots[min(n - 1, int(i * (n - 1) / len(stat_calc)))].append([l])
            for i, g_ in enumerate(rg):
                slots[int(i * n * rd_end / len(rg))].append(g_)
            for i, g_ in enumerate(dg):
                slots[min(n - 1, int((i + 0.5) * n / len(dg)))].append(g_)
        for i in range(n):
            k(main[i])
            for g_ in slots[i]:
                for l in g_:
                    k(l)
    k('s_waitcnt vmcnt(%d) lgkmcnt(0)' % vm_wait(31))
    k('s_barrier')
    if diag:
        stamp(k, 6)
    lds = []

    def lds_issue(line, tag):
        k(line)
        lds.append(tag)

    def lds_wait(tag):
        if tag not in lds:
            return
        last = len(lds) - 1 - lds[::-1].index(tag)
        k('s_waitcnt lgkmcnt(%d)' % min(15, len(lds) - 1 - last))

    for p_ in range(4):
        valu = list(setup_lines) if p_ == 0 else epi_pair(2 * (p_ - 1), scalar)
        started = False
        cdone = False
        for q_ in range(4):
            g = 4 * p_ + q_
            st = T0 + q_
            lds_wait(('G', g))
            rd = tail_reads(g + 2) if g + 2 < 16 else []
            idx = 0
            for dj in range(2):
                for bb in range(7):
                    b = bb if dj == 0 else 6 - bb
                    a = acc(2 * p_ + dj, b)
                    k('v_mfma_f32_16x16x32_bf16 %s, %s, %s, %s' % (vr(a, 4), ar(tW(st, b), 4), ar(tT(g, dj), 4), vr(a, 4)))
                    nrd = 2 if len(rd) > 13 - idx else 1
                    for _ in range(nrd):
                        if rd:
                            lds_issue(rd.pop(0), ('G', g + 2))
                    idx += 1
                    if q_ == 0 and dj == 0 and bb < 2:
                        continue
                    if not started and p_ > 0:
                        lds_wait(('C', p_ - 1))
                        started = True
                    for _ in range(vper):
                        if valu:
                            k(valu.pop(0))
                    if not valu and not cdone:
                        for l in creads(2 * p_):
                            lds_issue(l, ('C', p_))
                        cdone = True
            assert not rd
        for l in valu:
            k(l)
        if not cdone:
            for l in creads(2 * p_):
                lds_issue(l, ('C', p_))
    lds_wait(('C', 3))
    k('s_nop 1')
    for l in epi_pair(6):
        k(l)
    if diag:
        stamp_flush(k, kidx, 8, sWS, 48, 2, 0)
    k.label(done)
    k('s_endpgm')
    ao = MB + 32
    txt = k.text(ao + 232, ao)
    return dict(name=name, text=txt, grid=256, block=256, lds=LDS, nst=8)
```

```python
from asmlib import *


def gen_kd(PD=2, diag=False, kidx=3, nomfma=False, name='kd_kernel', lead=4, ndes=2, tflag='', wflag='', stflag='', spf=0, spf_start=2, spf_wait=8, korder='', dbg='', tstore=True, wlin=False):
    k = K(name)
    NT = PD + 1
    NWS = 4
    NSTEP = 28
    RED = 65536
    LDS = 163840
    MB = 128
    vDT = [MB + i for i in range(4)]
    vDW = [MB + 4 + i for i in range(4)]
    vWR = [MB + 8 + i for i in range(4)]
    vLane = MB + 12
    vTab = MB + 13
    vRW = [MB + 14 + i for i in range(3)]
    vRR = MB + 17
    vAO = MB + 18
    vT = MB + 20
    vH = MB + 32
    vMU = MB + 48
    NV = MB + 52
    if spf:
        assert PD == 1
        NV = MB + 32
    sWS, sWave, sTT, sCT, sTO, sWO, sMW, sNX = 4, 28, 29, 30, 31, 32, 34, 36
    sT = 40
    RT, RW, RO, RH, RMU = 12, 16, 20, 24, 52

    def acc(j, b):
        return (j * 4 + b) * 4

    def fT(s, j):
        return s * 32 + j * 4

    def fW(s, b):
        return NT * 32 + s * 16 + b * 4

    done = k.newlabel('done')
    k('s_cmp_ge_u32 s2, 256')
    k('s_cbranch_scc1 %s' % done)
    if diag:
        stamp(k, 0)
    k('s_load_dwordx4 s[8:11], s[0:1], %d' % KARG['wd'])
    k('s_load_dwordx2 s[4:5], s[0:1], %d' % KARG['ws'])
    k('v_and_b32 v%d, 63, v0' % vLane)
    k('v_lshrrev_b32 v%d, 6, v0' % vT)
    k('s_and_b32 s%d, s2, 7' % sT)
    k('v_readfirstlane_b32 s%d, v%d' % (sWave, vT))
    k('s_lshr_b32 s%d, s2, 3' % (sT + 1))
    k('s_lshr_b32 s%d, s%d, 1' % (sT + 2, sT))
    k('s_lshl_b32 s%d, s%d, 2' % (sT + 2, sT + 2))
    k('s_lshr_b32 s%d, s%d, 3' % (sT + 3, sT + 1))
    k('s_add_u32 s%d, s%d, s%d' % (sTT, sT + 2, sT + 3))
    k('s_and_b32 s%d, s%d, 1' % (sT + 2, sT))
    k('s_lshl_b32 s%d, s%d, 3' % (sT + 2, sT + 2))
    k('s_and_b32 s%d, s%d, 7' % (sT + 3, sT + 1))
    k('s_add_u32 s%d, s%d, s%d' % (sCT, sT + 2, sT + 3))
    if lead:
        k('s_lshl_b32 s%d, s%d, 1' % (sT + 2, sTT))
        k('s_add_u32 s%d, s%d, s%d' % (sT + 2, sT + 2, sCT))
        k('s_and_b32 s%d, s%d, 7' % (sT + 2, sT + 2))
        pat = ((1 << ndes) - 1) * 0x01010101
        k('s_mov_b32 s%d, 0x%x' % (sT + 4, pat))
        k('s_mov_b32 s%d, 0x%x' % (sT + 5, pat))
        k('s_lshl_b64 s[%d:%d], s[%d:%d], s%d' % (sT + 4, sT + 5, sT + 4, sT + 5, sT + 2))
        k('s_and_b32 s%d, s%d, 0x0fffffff' % (sT + 5, sT + 5))
        M = sT + 5
        k('v_lshrrev_b32 v%d, v%d, s%d' % (vT, vLane, M) if False else 'v_mov_b32 v%d, s%d' % (vT + 1, M))
        k('v_lshrrev_b32 v%d, v%d, v%d' % (vT, vLane, vT + 1))
        k('v_and_b32 v%d, 1, v%d' % (vT, vT))
        k('v_cmp_eq_u32 vcc, 1, v%d' % vT)
        k('v_subrev_u32 v%d, %d, v%d' % (vT + 2, lead, vLane))
        k('v_max_i32 v%d, 0, v%d' % (vT + 2, vT + 2))
        k('v_add_u32 v%d, %d, v%d' % (vT + 3, lead + 1, vLane))
        k('v_min_u32 v%d, 28, v%d' % (vT + 3, vT + 3))
        k('v_cndmask_b32 v%d, v%d, v%d, vcc' % (vT + 2, vLane, vT + 2))
        k('v_cndmask_b32 v%d, v%d, v%d, vcc' % (vT + 3, vT + 3, vLane))
        k('v_bfm_b32 v%d, v%d, 0' % (vT + 4, vT + 2))
        k('v_and_b32 v%d, v%d, v%d' % (vT + 4, vT + 4, vT + 1))
        k('v_bcnt_u32_b32 v%d, v%d, 0' % (vT + 4, vT + 4))
        k('v_sub_u32 v%d, v%d, v%d' % (vT + 2, vT + 2, vT + 4))
        k('v_bfm_b32 v%d, v%d, 0' % (vT + 4, vT + 3))
        k('v_and_b32 v%d, v%d, v%d' % (vT + 4, vT + 4, vT + 1))
        k('v_bcnt_u32_b32 v%d, v%d, v%d' % (vT + 2, vT + 4, vT + 2))
        k('v_cmp_gt_u32 vcc, 28, v%d' % vLane)
        k('s_nop 1')
        k('v_cndmask_b32 v%d, v%d, v%d, vcc' % (vT + 2, vLane, vT + 2))
        k('v_lshlrev_b32 v%d, 2, v%d' % (vT + 2, vT + 2))
        k('ds_permute_b32 v%d, v%d, v%d' % (vTab, vT + 2, vLane))
    else:
        k('v_mov_b32 v%d, v%d' % (vTab, vLane))
    k('v_lshlrev_b32 v%d, 4, v%d' % (vT, vLane))
    for p in range(4):
        k('s_add_u32 s%d, s%d, %d' % (sT + 2, sWave, p + 1))
        k('s_and_b32 s%d, s%d, 3' % (sT + 2, sT + 2))
        k('s_lshl_b32 s%d, s%d, 11' % (sT + 3, sT + 2))
        k('v_add_u32 v%d, s%d, v%d' % (vDT[p], sT + 3, vT))
        k('s_mul_i32 s%d, s%d, %d' % (sT + 3, sT + 2, 3 * 8192))
        k('s_add_u32 s%d, s%d, %d' % (sT + 3, sT + 3, RED + (p % 3) * 8192))
        k('v_add_u32 v%d, s%d, v%d' % (vRW[p] if p < 3 else vRR, sT + 3, vT))
    k('v_lshrrev_b32 v%d, 3, v%d' % (vT, vLane))
    k('v_and_b32 v%d, 6, v%d' % (vT + 1, vT))
    k('v_and_b32 v%d, 7, v%d' % (vT + 2, vLane))
    k('v_xor_b32 v%d, v%d, v%d' % (vT + 2, vT + 2, vT + 1))
    k('v_and_b32 v%d, 3, v%d' % (vT + 3, vT))
    k('v_lshrrev_b32 v%d, 2, v%d' % (vT + 4, vT))
    k('v_lshl_add_u32 v%d, v%d, 3, v%d' % (vT + 3, vT + 4, vT + 3))
    k('v_lshlrev_b32 v%d, 11, v%d' % (vT + 3, vT + 3))
    k('v_lshl_add_u32 v%d, v%d, 4, v%d' % (vT + 3, vT + 2, vT + 3))
    k('s_lshl_b32 s%d, s%d, 7' % (sT + 2, sCT))
    k('v_add_u32 v%d, s%d, v%d' % (vT + 3, sT + 2, vT + 3))
    for p in range(4):
        hh, qh = p >> 1, p & 1
        kk = 16 * qh + 4 * hh
        k('v_add_u32 v%d, %d, v%d' % (vDW[p], kk * 2048 + 4096 - 1024 * p, vT + 3))
    if wlin:
        k('v_lshlrev_b32 v%d, 4, v%d' % (vDW[0], vLane))
    k('s_lshl_b32 s%d, s%d, 14' % (sMW, sWave))
    k('s_mul_i32 s%d, s%d, %d' % (sT, sTT, 112 * 8192))
    k('s_add_u32 s%d, s%d, 0x%x' % (sT, sT, WS_ACT))
    k('s_waitcnt lgkmcnt(0)')
    if diag:
        stamp(k, 1)
    pfl = k.newlabel('pf')
    if spf:
        k('s_cmp_ge_u32 s%d, 4' % sWave)
        k('s_cbranch_scc1 %s' % pfl)
    if korder == '':
        k('v_lshlrev_b32 v%d, 2, v%d' % (vTab, vTab))
        k('v_add_u32 v%d, s%d, v%d' % (vTab, sWave, vTab))
    elif korder == 'xrot':
        k('s_bfe_u32 s%d, s2, 0x20001' % (sT + 2))
        k('s_lshl_b32 s%d, s%d, 3' % (sT + 2, sT + 2))
        k('v_add_u32 v%d, s%d, v%d' % (vTab, sT + 2, vTab))
        k('v_subrev_u32 v%d, 28, v%d' % (vT, vTab))
        k('v_min_u32 v%d, v%d, v%d' % (vTab, vTab, vT))
        k('v_lshlrev_b32 v%d, 2, v%d' % (vTab, vTab))
        k('v_add_u32 v%d, s%d, v%d' % (vTab, sWave, vTab))
    elif korder == 'quart':
        k('s_mul_i32 s%d, s%d, 28' % (sT + 2, sWave))
        k('v_add_u32 v%d, s%d, v%d' % (vTab, sT + 2, vTab))
    elif korder == 'wave':
        k('s_lshr_b32 s%d, s%d, 1' % (sT + 2, sWave))
        k('s_xor_b32 s%d, s%d, s2' % (sT + 2, sT + 2))
        k('s_and_b32 s%d, s%d, 1' % (sT + 2, sT + 2))
        k('s_mul_i32 s%d, s%d, 56' % (sT + 2, sT + 2))
        k('s_and_b32 s%d, s%d, 1' % (sT + 3, sWave))
        k('s_add_u32 s%d, s%d, s%d' % (sT + 2, sT + 2, sT + 3))
        k('v_lshlrev_b32 v%d, 1, v%d' % (vTab, vTab))
        k('v_add_u32 v%d, s%d, v%d' % (vTab, sT + 2, vTab))
    elif korder in ('alt', 'first'):
        if korder == 'alt':
            k('s_lshr_b32 s%d, s%d, 1' % (sT + 2, sWave))
            k('s_xor_b32 s%d, s%d, s2' % (sT + 2, sT + 2))
            k('v_xor_b32 v%d, s%d, v%d' % (vT, sT + 2, vTab))
            k('v_and_b32 v%d, 1, v%d' % (vT, vT))
            k('v_mul_u32_u24 v%d, 56, v%d' % (vT, vT))
            k('v_lshrrev_b32 v%d, 1, v%d' % (vTab, vTab))
            k('v_lshl_add_u32 v%d, v%d, 2, v%d' % (vTab, vTab, vT))
            k('v_add_u32 v%d, s%d, v%d' % (vTab, sWave, vTab))
        else:
            k('s_and_b32 s%d, s2, 1' % (sT + 2))
            k('s_mul_i32 s%d, s%d, 14' % (sT + 2, sT + 2))
            k('v_add_u32 v%d, s%d, v%d' % (vTab, sT + 2, vTab))
            k('v_subrev_u32 v%d, 28, v%d' % (vT, vTab))
            k('v_min_u32 v%d, v%d, v%d' % (vTab, vTab, vT))
            k('v_lshlrev_b32 v%d, 2, v%d' % (vTab, vTab))
            k('v_add_u32 v%d, s%d, v%d' % (vTab, sWave, vTab))
    k('v_lshlrev_b32 v%d, 13, v%d' % (vTab, vTab))
    k('s_add_u32 s%d, s4, s%d' % (RT, sT))
    k('v_readlane_b32 s%d, v%d, 0' % (sNX, vTab))
    k('s_addc_u32 s%d, s5, 0' % (RT + 1))
    k('s_mov_b32 s%d, 0x%x' % (RT + 2, 0 if 'not' in dbg else 112 * 8192))
    k('s_mov_b32 s%d, 0x20000' % (RT + 3))
    if wlin:
        k('s_mul_i32 s%d, s%d, %d' % (sT + 2, sCT, 112 * 4096))
        k('s_add_u32 s%d, s%d, 0x%x' % (sT + 2, sT + 2, WS_WD))
        k('s_add_u32 s%d, s4, s%d' % (RW, sT + 2))
        k('s_addc_u32 s%d, s5, 0' % (RW + 1))
        k('s_mov_b32 s%d, 0x%x' % (RW + 2, 112 * 4096))
    else:
        k('s_sub_u32 s%d, s8, 0x1000' % RW)
        k('s_subb_u32 s%d, s9, 0' % (RW + 1))
        k('s_mov_b32 s%d, 0x%x' % (RW + 2, 0 if 'now' in dbg else 3584 * 2048 + 4096))
    k('s_mov_b32 s%d, 0x20000' % (RW + 3))
    wsh = 's_lshr_b32 s%d, s%d, 1' % (sWO, sNX) if wlin else 's_lshl_b32 s%d, s%d, 3' % (sWO, sNX)
    k(wsh)

    def wdma(i, p):
        g = []
        if p == 0:
            g += ['s_add_u32 m0, s%d, %d' % (sMW, (i % NWS) * 4096), 's_nop 0']
        g.append('buffer_load_dwordx4 v%d, s[%d:%d], s%d offen offset:%d %s lds' % (vDW[0 if wlin else p], RW, RW + 3, sWO, 1024 * p, wflag))
        return g

    def advance(i):
        g = ['s_mov_b32 s%d, s%d' % (sTO, sNX)]
        if i + 1 < NSTEP:
            g += ['v_readlane_b32 s%d, v%d, %d' % (sNX, vTab, i + 1), 's_nop 2', wsh]
        return g

    def tload(i, j):
        return ['buffer_load_dwordx4 %s, v%d, s[%d:%d], s%d offen offset:%d %s' % (ar(fT(i % NT, j), 4), vDT[j >> 1], RT, RT + 3, sTO, 1024 * (j & 1), tflag)]

    def wread(i, idx):
        b, hh = idx >> 1, idx & 1
        return ['ds_read_b64_tr_b16 %s, v%d offset:%d' % (ar(fW(i % 2, b) + 2 * hh, 2), vWR[b], (i % NWS) * 4096 + hh * 2048)]

    log = []

    def issue(lines, op):
        log.append(op)
        return lines

    def group_ops(i):
        out = {j: [] for j in range(8)}
        for j in range(8):
            if i + 1 < NSTEP:
                for p in {0: [0, 1], 1: [2, 3]}.get(j, []):
                    out[j].append((('W', i + 1, p), wdma(i + 1, p)))
            l = tload(i, j)
            if j == 7 and i + 1 < NSTEP:
                l = l + advance(i + 1)
            out[j].append((('T', i, j), l))
        return out

    def need(op):
        return len(log) - 1 - log.index(op)

    for p in range(4):
        for l in issue(wdma(0, p), ('W', 0, p)):
            k(l)
    for l in advance(0):
        k(l)
    for i in range(PD):
        go = group_ops(i)
        for j in range(8):
            for op, lines in go[j]:
                for l in issue(lines, op):
                    k(l)
    k('v_lshrrev_b32 v%d, 2, v%d' % (vT, vLane))
    k('v_and_b32 v%d, 6, v%d' % (vT + 1, vT))
    k('v_and_b32 v%d, 3, v%d' % (vT + 2, vLane))
    k('v_lshlrev_b32 v%d, 3, v%d' % (vT + 2, vT + 2))
    k('v_lshl_add_u32 v%d, v%d, 7, v%d' % (vT + 2, vT, vT + 2))
    k('v_add_u32 v%d, s%d, v%d' % (vT + 2, sMW, vT + 2))
    for b in range(4):
        k('v_xor_b32 v%d, %d, v%d' % (vT + 3, 2 * b, vT + 1))
        k('v_lshl_add_u32 v%d, v%d, 4, v%d' % (vWR[b], vT + 3, vT + 2))
    srd(k, RO, 10, 2048 * 2048)
    srd(k, RH, sWS, 2048 * 2048, WS_HC)
    srd(k, RMU, sWS, 16384, WS_MU)
    vN, vQ, vCh, vAH = vT, vT + 1, vT + 2, vT + 3
    vX = vT + 4
    k('v_and_b32 v%d, 15, v%d' % (vN, vLane))
    k('v_lshrrev_b32 v%d, 4, v%d' % (vQ, vLane))
    k('v_and_b32 v%d, 1, v%d' % (vX, vQ))
    k('v_lshrrev_b32 v%d, 1, v%d' % (vX + 1, vQ))
    k('v_lshl_add_u32 v%d, v%d, 1, v%d' % (vCh, vX, vX + 1))
    k('s_lshl_b32 s%d, s%d, 3' % (sT + 2, sTT))
    k('s_lshl_b32 s%d, s%d, 1' % (sT + 3, sWave))
    k('s_add_u32 s%d, s%d, s%d' % (sT + 2, sT + 2, sT + 3))
    k('s_lshl_b32 s%d, s%d, 6' % (sT + 3, sT + 2))
    k('s_lshr_b32 s%d, s%d, 3' % (sT + 4, sCT))
    k('s_lshl_b32 s%d, s%d, 13' % (sT + 4, sT + 4))
    k('s_add_u32 s%d, s%d, s%d' % (sT + 3, sT + 3, sT + 4))
    k('v_lshlrev_b32 v%d, 2, v%d' % (vMU + 1, vN))
    k('v_add_u32 v%d, s%d, v%d' % (vMU + 1, sT + 3, vMU + 1))
    k('s_lshr_b32 s%d, s%d, 4' % (sT + 3, sT + 2))
    k('s_lshl_b32 s%d, s%d, 4' % (sT + 3, sT + 3))
    k('s_add_u32 s%d, s%d, s%d' % (sT + 3, sT + 3, sCT))
    k('s_lshl_b32 s%d, s%d, 15' % (sT + 3, sT + 3))
    k('s_and_b32 s%d, s%d, 15' % (sT + 4, sT + 2))
    k('s_lshl_b32 s%d, s%d, 10' % (sT + 4, sT + 4))
    k('s_add_u32 s%d, s%d, s%d' % (sT + 3, sT + 3, sT + 4))
    k('s_add_u32 s%d, s%d, 0x4000' % (sT + 4, sT + 3))
    k('v_lshl_add_u32 v%d, v%d, 4, v%d' % (vAH, vCh, vN))
    k('v_lshlrev_b32 v%d, 4, v%d' % (vAH, vAH))
    k('s_lshl_b32 s%d, s%d, 20' % (sT + 5, sWave))
    k('s_lshl_b32 s%d, s%d, 11' % (sT + 6, sTT))
    k('s_add_u32 s%d, s%d, s%d' % (sT + 5, sT + 5, sT + 6))
    k('s_lshl_b32 s%d, s%d, 7' % (sT + 6, sCT))
    k('s_add_u32 s%d, s%d, s%d' % (sT + 5, sT + 5, sT + 6))
    k('s_add_u32 s%d, s%d, 0x80000' % (sT + 6, sT + 5))
    vTW, vTR = vT + 8, vT + 9
    if tstore:
        k('v_and_b32 v%d, 7, v%d' % (vX, vN))
        k('v_xor_b32 v%d, v%d, v%d' % (vX, vX, vCh))
        k('v_lshlrev_b32 v%d, 7, v%d' % (vTW, vN))
        k('v_lshl_add_u32 v%d, v%d, 4, v%d' % (vTW, vX, vTW))
        k('v_add_u32 v%d, s%d, v%d' % (vTW, sMW, vTW))
        k('v_xor_b32 v%d, 64, v%d' % (vT + 10, vTW))
        k('v_lshrrev_b32 v%d, 3, v%d' % (vX, vLane))
        k('v_and_b32 v%d, 7, v%d' % (vX + 1, vLane))
        k('v_lshlrev_b32 v%d, 15, v%d' % (vAO, vX))
        k('v_lshl_add_u32 v%d, v%d, 4, v%d' % (vAO, vX + 1, vAO))
        k('v_xor_b32 v%d, v%d, v%d' % (vX + 1, vX + 1, vX))
        k('v_lshlrev_b32 v%d, 7, v%d' % (vTR, vX))
        k('v_lshl_add_u32 v%d, v%d, 4, v%d' % (vTR, vX + 1, vTR))
        k('v_add_u32 v%d, s%d, v%d' % (vTR, sMW, vTR))
        for i in range(1, 4):
            k('s_add_u32 s%d, s%d, 0x%x' % (sT + 5 + i, sT + 5, i * 0x40000))
    else:
        k('v_lshlrev_b32 v%d, 15, v%d' % (vAO, vN))
        k('v_lshl_add_u32 v%d, v%d, 4, v%d' % (vAO, vCh, vAO))

    aH = fT((NSTEP - 2) % NT, 0)

    def hreg(dj, be):
        return ar(aH + 8 * dj + 4 * be, 4) if spf else vr(vH + 8 * dj + 4 * be, 4)

    def hloads():
        g = []
        for dj in range(2):
            for be in range(2):
                g.append((('H', dj, be), ['buffer_load_dwordx4 %s, v%d, s[%d:%d], s%d offen offset:%d' % (hreg(dj, be), vAH, RH, RH + 3, sT + 3 + be, 1024 * dj)]))
        return g

    k('s_waitcnt vmcnt(%d)' % need(('W', 0, 3)))
    for idx in range(8):
        for l in wread(0, idx):
            k(l)
    if diag:
        stamp(k, 2)
    for i in range(NSTEP):
        go = group_ops(i + PD) if i + PD < NSTEP else {j: [] for j in range(8)}
        if i == NSTEP - 3 and not spf:
            for j, h in enumerate(hloads()):
                go[6 + (j >> 1)].append(h)
        if i == NSTEP - 4:
            for dj in range(2):
                go[6 + dj].append((('M', dj), ['buffer_load_dword v%d, v%d, s[%d:%d], 0 offen offset:%d' % (vMU + 2 * dj, vMU + 1, RMU, RMU + 3, 64 * dj)]))
        if i == NSTEP - 1 and spf:
            for j, h in enumerate(hloads()):
                go[j >> 1].append(h)
        pend = []
        for j in range(8):
            n = need(('T', i, j))
            k('s_waitcnt vmcnt(%d)%s' % (n, ' lgkmcnt(0)' if j == 0 else ''))
            side = [issue(lines, op) for op, lines in go[j]]
            if 2 <= j <= 5 and i + 1 < NSTEP:
                side.append(wread(i + 1, 2 * (j - 2)))
                side.append(wread(i + 1, 2 * (j - 2) + 1))
            if i == NSTEP - 1 and j >= 2:
                jj = j - 2
                side = [['ds_write_b128 v%d, %s offset:%d' % (vRW[jj >> 1], vr(acc(jj, b), 4), ((jj & 1) * 4 + b) * 1024)] for b in range(4)]
            assert len(side) <= 4
            for b in range(4):
                a = acc(j, b)
                c = '0' if i == 0 else vr(a, 4)
                if nomfma:
                    k('s_nop 0')
                else:
                    k('v_mfma_f32_16x16x32_bf16 %s, %s, %s, %s' % (vr(a, 4), ar(fW(i % 2, b), 4), ar(fT(i % NT, j), 4), c))
                if b < len(side):
                    for l in side[b]:
                        k(l)
    if diag:
        stamp(k, 3)
    k('s_waitcnt lgkmcnt(0)')
    k('s_barrier')
    for idx in range(3):
        for qd in range(8):
            k('ds_read_b128 %s, v%d offset:%d' % (vr(32 * idx + 4 * qd, 4), vRR, idx * 8192 + qd * 1024))
    own = acc(6, 0)
    for idx in range(3):
        k('s_waitcnt lgkmcnt(%d)' % min(15, 8 * (2 - idx)))
        for r in range(0, 32, 2):
            k('v_pk_add_f32 %s, %s, %s' % (vr(own + r, 2), vr(own + r, 2), vr(32 * idx + r, 2)))
    k('s_waitcnt vmcnt(0)')
    k('v_mov_b32 v%d, v%d' % (vMU + 1, vMU))
    k('v_mov_b32 v%d, v%d' % (vMU + 3, vMU + 2))
    if spf:
        vH = 0
        for r in range(16):
            k('v_accvgpr_read_b32 v%d, a%d' % (r, aH + r))
    for dj in range(2):
        for be in range(2):
            A = own + (dj * 4 + 2 * be) * 4
            B = A + 4
            for i in range(4):
                k('v_permlane16_swap_b32 v%d, v%d' % (A + i, B + i))
            H = vH + 8 * dj + 4 * be
            for i in range(4):
                D0 = A + 2 * i
                k('v_lshlrev_b32 v%d, 16, v%d' % (vX + 2, H + i))
                k('v_and_b32 v%d, 0xffff0000, v%d' % (vX + 3, H + i))
                k('v_pk_add_f32 %s, %s, %s' % (vr(D0, 2), vr(D0, 2), vr(vMU + 2 * dj, 2)))
                k('v_pk_add_f32 %s, %s, %s' % (vr(D0, 2), vr(D0, 2), vr(vX + 2, 2)))
                k('v_cvt_pk_bf16_f32 v%d, v%d, v%d' % (H + i, D0, D0 + 1))
            if tstore:
                k('ds_write_b128 v%d, %s offset:%d' % (vTW if be == 0 else vT + 10, vr(H, 4), 2048 * dj))
            else:
                k('buffer_store_dwordx4 %s, v%d, s[%d:%d], s%d offen offset:%d %s' % (vr(H, 4), vAO, RO, RO + 3, sT + 5 + dj, 64 * be, stflag))
    if tstore:
        k('s_waitcnt lgkmcnt(0)')
        for i in range(4):
            k('ds_read_b128 %s, v%d offset:%d' % (vr(32 + 4 * i, 4), vTR, 1024 * i))
        for i in range(4):
            k('s_waitcnt lgkmcnt(%d)' % (3 - i))
            k('buffer_store_dwordx4 %s, v%d, s[%d:%d], s%d offen %s' % (vr(32 + 4 * i, 4), vAO, RO, RO + 3, sT + 5 + i, stflag))
    if diag:
        k('s_waitcnt vmcnt(0)')
        stamp_flush(k, kidx, 5, sWS, 48, 2, 0)
    if spf:
        k('s_endpgm')
        k.label(pfl)
        wl = k.newlabel('pfw')
        go_ = k.newlabel('pfgo')
        k('s_and_b32 s%d, s%d, 1' % (sT + 2, sWave))
        k('s_cmp_ge_u32 s%d, 6' % sWave)
        k('s_cbranch_scc1 %s' % wl)
        k('s_and_b32 s%d, s%d, 7' % (sT + 3, sCT))
        k('s_lshl_b32 s%d, s%d, 12' % (sT + 3, sT + 3))
        k('s_lshl_b32 s%d, s%d, 11' % (sT + 2, sT + 2))
        k('s_add_u32 s%d, s%d, s%d' % (sT + 3, sT + 3, sT + 2))
        k('s_add_u32 s%d, s%d, s%d' % (sT + 3, sT + 3, sT))
        k('s_add_u32 s%d, s%d, %d' % (sT + 3, sT + 3, spf_start * 32768))
        k('s_add_u32 s12, s4, s%d' % (sT + 3))
        k('s_addc_u32 s13, s5, 0')
        la = k.newlabel('pfa')
        k('s_mov_b32 s%d, %d' % (sT + 4, spf_start))
        k.label(la)
        for n in range(16):
            k('s_load_dword s%d, s[12:13], 0x%x' % (64 + n, 128 * n))
            if n % 4 == 3:
                k('s_waitcnt lgkmcnt(%d)' % spf_wait)
        k('s_add_u32 s12, s12, 0x8000')
        k('s_addc_u32 s13, s13, 0')
        k('s_add_u32 s%d, s%d, 1' % (sT + 4, sT + 4))
        k('s_cmp_lt_u32 s%d, %d' % (sT + 4, NSTEP))
        k('s_cbranch_scc1 %s' % la)
        k('s_endpgm')
        k.label(wl)
        k('s_and_b32 s%d, s%d, 3' % (sT + 3, sTT))
        k('s_lshl_b32 s%d, s%d, 16' % (sT + 3, sT + 3))
        k('s_lshl_b32 s%d, s%d, 15' % (sT + 2, sT + 2))
        k('s_add_u32 s%d, s%d, s%d' % (sT + 3, sT + 3, sT + 2))
        k('s_lshl_b32 s%d, s%d, 7' % (sT + 2, sCT))
        k('s_add_u32 s%d, s%d, s%d' % (sT + 3, sT + 3, sT + 2))
        k('s_add_u32 s%d, s%d, %d' % (sT + 3, sT + 3, spf_start * 262144))
        k('s_add_u32 s12, s8, s%d' % (sT + 3))
        k('s_addc_u32 s13, s9, 0')
        lb = k.newlabel('pfb')
        k('s_mov_b32 s%d, %d' % (sT + 4, spf_start))
        k.label(lb)
        for n in range(16):
            k('s_load_dword s%d, s[12:13], 0x%x' % (64 + n, 2048 * n))
            if n % 4 == 3:
                k('s_waitcnt lgkmcnt(%d)' % spf_wait)
        k('s_add_u32 s12, s12, 0x40000')
        k('s_addc_u32 s13, s13, 0')
        k('s_add_u32 s%d, s%d, 1' % (sT + 4, sT + 4))
        k('s_cmp_lt_u32 s%d, %d' % (sT + 4, NSTEP))
        k('s_cbranch_scc1 %s' % lb)
    k.label(done)
    k('s_endpgm')
    txt = k.text(NV + NT * 32 + 32, NV)
    return dict(name=name, text=txt, grid=256, block=512 if spf else 256, lds=LDS, nst=5)
```

```python
from gen_all import *
t = make(False, **var())
doc = '''; ---------------------------------------------------------------------------------------------
; ---------------------------------------------------------------------------------------------
'''
i = t.index('.amdgcn_target')
t = t[:i] + doc + t[i:]
open('sequential_preLN__spectral_fnet__swiglu_ffn__prompt.s', 'w').write(t)
```

```python
import sys, json
from ka3 import gen_ka
from kb4 import gen_kb
import kc2, kc4
def gen_kc(v=2, **kw):
    return (kc4 if v == 4 else kc2).gen_kc(**kw)
from kd2 import gen_kd
from build import build
from asmlib import unpack_pk
def make(diag=False, kc=None, kd=None, ka=None, kb=None, st=None, small='', nopk=(1, 1)):
    ks = [gen_ka(diag=diag, **(ka or {})), gen_kb(diag=diag, **(kb or {})), gen_kc(diag=diag, **(kc or {})), gen_kd(diag=diag, **(kd or {}))]
    for kk, fl in zip(ks, st or ['', '', '', '']):
        if fl:
            kk['text'] = '\n'.join((l + ' ' + fl) if ('buffer_store_' in l and 's[48:51]' not in l.replace('RH','') and 's[56:59]' not in l) or (kk['name'] == 'kb_kernel' and 'buffer_store_' in l and 's[56:59]' not in l) else l for l in kk['text'].split('\n'))
    for kk, m_ in zip(ks, nopk):
        if m_:
            kk['text'] = unpack_pk(kk['text'], only_mod=(m_ == 2))
    if small:
        for kk in ks[:2]:
            kk['text'] = '\n'.join((l + ' ' + small) if ('buffer_store_dword ' in l) else l for l in kk['text'].split('\n'))
    t = build(ks)
    if diag:
        t = '; nst=' + json.dumps([k.get('nst') for k in ks]) + '\n' + t
    return t
BEST = dict(kc=dict(lead=6, S0=8, pf1=0, pfx=(27, 29), ct=(2, 10, 18, 26), order='snake', rd_end=0.9, place='excl', v=2, overlap=False), kd=dict(PD=2, lead=2, korder='xrot'), kb=dict(pf=['gu8'], stflag='sc1'), ka=dict(stflag='sc1'))

def var(**kw):
    import copy
    c = copy.deepcopy(BEST)
    for k_, v in kw.items():
        c[k_].update(v)
    return c

if __name__ == '__main__':
    V = {
     'v_a': var(),
     'v_b': var(kd=dict(korder='xalt')),
     'v_c': var(kd=dict(korder='xalt', lead=4)),
     'v_d': var(kd=dict(korder='xalt2')),
     'v_e': var(kd=dict(PD=1)),
     'v_f': var(kd=dict(PD=3)),
    }
    for n, o in V.items():
        open(n + '.s', 'w').write(make(True, **o))
```

```python
from asmlib import *
from kc import f32hex, LOG2E


def gen_kc(diag=False, kidx=2, name='kc_kernel', LA=4, rd_end=0.9, stflag='sc1', lead=6, S0=8, ndes=1, ct=(2, 10, 18, 26),
           pfx=(27, 28), scalar=True, prio=2, bprio=1, T0=28, **unused):
    k = K(name)
    NW, NS, TB = 8, 5, 4
    NACC = TB * 7 * 4
    MB = NACC
    SLOT = 16384 + 7168 + 16 + 7168
    GOFF = 16384
    UOFF = 7184
    RS = NS * SLOT
    LDS = RS + 4096
    TD, WD = 2, 2
    D = TD + WD
    FSET = (TB + 7) * 4
    vTok = [MB + 0, MB + 1, MB + 2]
    vW = [MB + 3, MB + 4, MB + 5]
    vW6 = [MB + 6, MB + 7, MB + 8]
    vDT = MB + 9
    vDW = [MB + 10, MB + 11]
    vCT = MB + 12
    vLane = MB + 14
    vPF = MB + 15
    vT = MB + 16
    vTab = MB + 31
    sWS, sWave, sRT, sCT, sTO, sWO, sRho, sSS, sMT, sMW = 4, 28, 29, 30, 31, 32, 33, 35, 36, 37
    sEx = 38
    sT = 41
    RT, RW, RO, RSS, RP, RC = 12, 16, 20, 24, 52, 56

    def acc(j, b):
        return (j * 7 + b) * 4

    def fT(s, j):
        return s * FSET + j * 4

    def fW(s, b):
        return s * FSET + TB * 4 + b * 4

    done = k.newlabel('done')
    k('s_cmp_ge_u32 s2, 256')
    k('s_cbranch_scc1 %s' % done)
    if diag:
        stamp(k, 0)
    k('s_load_dwordx4 s[8:11], s[0:1], %d' % KARG['wg'])
    k('s_load_dwordx2 s[4:5], s[0:1], %d' % KARG['ws'])
    k('s_load_dwordx2 s[6:7], s[0:1], %d' % KARG['wd'])
    k('v_and_b32 v%d, 63, v0' % vLane)
    k('v_lshrrev_b32 v%d, 6, v0' % vT)
    k('s_and_b32 s%d, s2, 7' % sT)
    k('v_readfirstlane_b32 s%d, v%d' % (sWave, vT))
    k('s_lshr_b32 s%d, s2, 3' % (sT + 1))
    k('s_lshr_b32 s%d, s%d, 2' % (sRT, sT + 1))
    k('s_and_b32 s%d, s%d, 3' % (sT + 1, sT + 1))
    k('s_lshl_b32 s%d, s%d, 2' % (sT, sT))
    k('s_add_u32 s%d, s%d, s%d' % (sCT, sT, sT + 1))
    k('s_lshl_b32 s%d, s%d, 1' % (sRho, sT + 1))
    k('s_add_u32 s%d, s%d, s%d' % (sRho, sRho, sRT))
    k('s_and_b32 s%d, s%d, 1' % (sT + 2, sWave))
    k('s_lshr_b32 s%d, s%d, 1' % (sT + 3, sWave))
    k('v_lshlrev_b32 v%d, 4, v%d' % (vT, vLane))
    k('s_mul_i32 s%d, s%d, %d' % (sMT, sWave, TD * 1024))
    k('v_add_u32 v%d, s%d, v%d' % (vDT, sMT, vT))
    k('s_mul_i32 s%d, s%d, 224' % (sT + 5, sCT))
    k('s_and_b32 s%d, s%d, 1' % (sT + 4, sT + 3))
    k('s_lshl_b32 s%d, s%d, 2' % (sT + 4, sT + 4))
    k('s_lshr_b32 s%d, s%d, 1' % (sT + 6, sT + 3))
    k('s_add_u32 s%d, s%d, s%d' % (sT + 4, sT + 4, sT + 6))
    k('s_mul_i32 s%d, s%d, %d' % (sT + 4, sT + 4, 4 * 7168))
    k('s_add_u32 s%d, s%d, s%d' % (sT + 5, sT + 5, sT + 4))
    for i in range(WD):
        k('v_add_u32 v%d, %d, v%d' % (vT + 1, 64 * i, vLane))
        k('v_mul_u32_u24 v%d, 4682, v%d' % (vT + 2, vT + 1))
        k('v_lshrrev_b32 v%d, 16, v%d' % (vT + 2, vT + 2))
        k('v_and_b32 v%d, 12, v%d' % (vT + 3, vT + 2))
        k('v_add_u32 v%d, v%d, v%d' % (vT + 3, vT + 3, vT + 2))
        k('v_mul_u32_u24 v%d, 7168, v%d' % (vT + 3, vT + 3))
        k('v_mul_u32_u24 v%d, 224, v%d' % (vT + 2, vT + 2))
        k('v_lshl_add_u32 v%d, v%d, 4, v%d' % (vT + 3, vT + 1, vT + 3))
        k('v_sub_u32 v%d, v%d, v%d' % (vT + 3, vT + 3, vT + 2))
        k('s_add_u32 s%d, s%d, %d' % (sT + 4, sT + 5, 4096 - 1024 * i))
        k('v_add_u32 v%d, s%d, v%d' % (vDW[i], sT + 4, vT + 3))
    k('s_mul_i32 s%d, s%d, %d' % (sMW, sT + 2, UOFF))
    k('s_mul_i32 s%d, s%d, %d' % (sT + 4, sT + 3, 8 * 224))
    k('s_add_u32 s%d, s%d, s%d' % (sMW, sMW, sT + 4))
    k('s_add_u32 s%d, s%d, %d' % (sMW, sMW, GOFF))
    k('s_mov_b32 s%d, -1' % sEx)
    k('s_mov_b32 s%d, 0xffff' % (sEx + 1))
    k('s_lshl_b32 s%d, s%d, 19' % (sT, sRT))
    k('s_add_u32 s%d, s%d, 0x%x' % (sT, sT, WS_HC))
    k('s_waitcnt lgkmcnt(0)')
    if diag:
        stamp(k, 1)
    k('s_add_u32 s%d, s4, s%d' % (RT, sT))
    k('s_addc_u32 s%d, s5, 0' % (RT + 1))
    k('s_mov_b32 s%d, 0x80000' % (RT + 2))
    k('s_mov_b32 s%d, 0x20000' % (RT + 3))
    k('s_cmp_eq_u32 s%d, 0' % (sT + 2))
    k('s_cselect_b32 s%d, s8, s10' % RW)
    k('s_cselect_b32 s%d, s9, s11' % (RW + 1))
    k('s_sub_u32 s%d, s%d, 0x1000' % (RW, RW))
    k('s_subb_u32 s%d, s%d, 0' % (RW + 1, RW + 1))
    k('s_mov_b32 s%d, 0x%x' % (RW + 2, 1024 * 7168 + 4096))
    k('s_mov_b32 s%d, 0x20000' % (RW + 3))

    def dma_groups(st):
        slot = (st % NS) * SLOT
        if st < 2:
            assert S0 - lead >= 2
            pre = ['s_mov_b32 s%d, 0x%x' % (sTO, st << 14), 's_mov_b32 s%d, 0x%x' % (sWO, st * 32 * 7168)]
        else:
            pre = ['v_readlane_b32 s%d, v%d, %d' % (sTO, vTab, st), 's_nop 1',
                   's_mul_i32 s%d, s%d, %d' % (sWO, sTO, 32 * 7168), 's_lshl_b32 s%d, s%d, 14' % (sTO, sTO)]
        w = ['buffer_load_dwordx4 v%d, s[%d:%d], s%d offen offset:%d lds' % (vDW[i], RW, RW + 3, sWO, 1024 * i) for i in range(2)]
        t = ['buffer_load_dwordx4 v%d, s[%d:%d], s%d offen offset:%d lds' % (vDT, RT, RT + 3, sTO, 1024 * i) for i in range(2)]
        return [['s_add_u32 m0, s%d, %d' % (sMW, slot)] + pre + [w[0]],
                ['s_mov_b64 exec, s[%d:%d]' % (sEx, sEx + 1), w[1], 's_mov_b64 exec, -1'],
                ['s_add_u32 m0, s%d, %d' % (sMT, slot), 's_nop 0', t[0]], [t[1]]]

    def read_groups(st):
        s = st & 1
        sl = st % NS
        bi, so = sl >> 1, (sl & 1) * SLOT
        g = [['ds_read_b128 %s, v%d offset:%d' % (ar(fT(s, 0), 4), vTok[bi], so)]]
        for b in range(7):
            for hh in range(2):
                if b < 6:
                    off = hh * 3584 + 32 * (b % 3) + (UOFF if b >= 3 else 0)
                    g.append(['ds_read_b64_tr_b16 %s, v%d offset:%d' % (ar(fW(s, b) + 2 * hh, 2), vW[bi], so + off)])
                else:
                    g.append(['ds_read_b64_tr_b16 %s, v%d offset:%d' % (ar(fW(s, b) + 2 * hh, 2), vW6[bi], so + hh * 3584)])
        for j in range(1, TB):
            g.append(['ds_read_b128 %s, v%d offset:%d' % (ar(fT(s, j), 4), vTok[bi], so + 1024 * j)])
        return g

    def emit(groups):
        for grp in groups:
            for l in grp:
                k(l)

    emit(dma_groups(0))
    emit(dma_groups(1))
    if diag:
        stamp(k, 2)
    k('s_and_b32 s%d, s%d, 7' % (sRho, sRho))
    order_table(k, 32, S0, lead, ndes, sRho, 60, vLane, vT + 1, vTab)
    srd(k, RO, sWS, 2048 * 3584 * 2, WS_ACT)
    srd(k, RP, 6, 3584 * 2048)
    k('s_mul_i32 s%d, s%d, %d' % (sT + 4, sT + 3, TB * 1024))
    k('v_add_u32 v%d, s%d, v%d' % (vTok[0], sT + 4, vT))
    k('v_lshrrev_b32 v%d, 2, v%d' % (vT + 1, vLane))
    k('v_mul_u32_u24 v%d, 224, v%d' % (vT + 1, vT + 1))
    k('s_mul_i32 s%d, s%d, 112' % (sT + 4, sT + 2))
    k('s_add_u32 s%d, s%d, %d' % (sT + 4, sT + 4, GOFF))
    k('v_add_u32 v%d, s%d, v%d' % (vT + 1, sT + 4, vT + 1))
    k('v_and_b32 v%d, 3, v%d' % (vT + 2, vLane))
    k('v_lshl_add_u32 v%d, v%d, 3, v%d' % (vW[0], vT + 2, vT + 1))
    k('v_lshrrev_b32 v%d, 1, v%d' % (vT + 3, vT + 2))
    k('v_lshl_add_u32 v%d, v%d, 3, v%d' % (vW6[0], vT + 3, vT + 1))
    k('v_and_b32 v%d, 1, v%d' % (vT + 3, vT + 2))
    k('v_mul_u32_u24 v%d, %d, v%d' % (vT + 3, UOFF, vT + 3))
    k('v_add3_u32 v%d, v%d, v%d, %d' % (vW6[0], vW6[0], vT + 3, 48))
    k('v_add_u32 v%d, 48, v%d' % (vW6[0], vW6[0]))
    for bi in (1, 2):
        for v in (vTok, vW, vW6):
            k('v_add_u32 v%d, %d, v%d' % (v[bi], 2 * bi * SLOT, v[0]))
    k('s_lshr_b32 s%d, s2, 3' % (sT + 4))
    k('s_lshl_b32 s%d, s%d, 3' % (sT + 4, sT + 4))
    k('s_add_u32 s%d, s%d, s%d' % (sT + 4, sT + 4, sWave))
    k('s_lshl_b32 s%d, s%d, 13' % (sT + 5, sT + 4))
    k('s_and_b32 s%d, s2, 1' % (sT + 6))
    k('s_lshl_b32 s%d, s%d, 10' % (sT + 6, sT + 6))
    k('s_add_u32 s%d, s%d, s%d' % (sT + 5, sT + 5, sT + 6))
    k('v_bfe_u32 v%d, v%d, 3, 2' % (vT + 1, vLane))
    k('v_lshlrev_b32 v%d, 11, v%d' % (vT + 1, vT + 1))
    k('v_and_b32 v%d, 7, v%d' % (vT + 2, vLane))
    k('v_lshl_add_u32 v%d, v%d, 7, v%d' % (vT + 1, vT + 2, vT + 1))
    k('v_lshrrev_b32 v%d, 5, v%d' % (vT + 2, vLane))
    k('v_lshl_add_u32 v%d, v%d, 30, v%d' % (vT + 1, vT + 2, vT + 1))
    k('v_add_u32 v%d, s%d, v%d' % (vPF, sT + 5, vT + 1))
    lab = k.newlabel('pc')
    k('s_getpc_b64 s[%d:%d]' % (RC, RC + 1))
    k.label(lab)
    k('s_sub_u32 s%d, s%d, %s-ka_kernel' % (RC, RC, lab))
    k('s_subb_u32 s%d, s%d, 0' % (RC + 1, RC + 1))
    k('s_mov_b32 s%d, L_code_end-ka_kernel' % (RC + 2))
    k('s_mov_b32 s%d, 0x20000' % (RC + 3))
    k('s_lshl_b32 s%d, s%d, 8' % (sT + 4, sT + 4))
    k('v_lshrrev_b32 v%d, 1, v%d' % (vCT, vLane))
    k('v_lshl_add_u32 v%d, v%d, 13, v%d' % (vCT, vCT, vLane))
    k('v_lshlrev_b32 v%d, 7, v%d' % (vCT, vCT))
    k('v_add_u32 v%d, s%d, v%d' % (vCT, sT + 4, vCT))
    k('s_waitcnt vmcnt(%d)' % D)
    if diag:
        stamp(k, 3)
    k('s_barrier')
    emit(read_groups(0))
    srd(k, RSS, sWS, 2048 * 64, WS_SS)
    aS = 2 * FSET
    k('s_lshl_b32 s%d, s%d, 14' % (sSS, sRT))
    k('s_lshl_b32 s%d, s%d, 11' % (sT + 4, sWave))
    k('s_add_u32 s%d, s%d, s%d' % (sSS, sSS, sT + 4))
    stat_loads = [['buffer_load_dwordx4 %s, v%d, s[%d:%d], s%d offen offset:%d' % (ar(aS + 4 * i, 4), vT, RSS, RSS + 3, sSS, 1024 * i)] for i in range(2)]
    e = K('x')
    a_, b_ = vT + 1, vT + 2
    R4 = [vT + 3, vT + 4]
    for i in range(2):
        e('v_accvgpr_read_b32 v%d, a%d' % (R4[i], aS + 4 * i))
        e('v_accvgpr_read_b32 v%d, a%d' % (a_, aS + 4 * i + 1))
        e('v_accvgpr_read_b32 v%d, a%d' % (b_, aS + 4 * i + 2))
        e('v_add_f32 v%d, v%d, v%d' % (R4[i], R4[i], a_))
        e('v_accvgpr_read_b32 v%d, a%d' % (a_, aS + 4 * i + 3))
        e('v_add_f32 v%d, v%d, v%d' % (R4[i], R4[i], b_))
        e('v_add_f32 v%d, v%d, v%d' % (R4[i], R4[i], a_))
    e('v_and_b32 v%d, 1, v%d' % (a_, vLane))
    e('v_cmp_eq_u32 vcc, 1, v%d' % a_)
    for mode in ('quad_perm:[1,0,3,2]', 'quad_perm:[2,3,0,1]'):
        for i in range(2):
            e('v_add_f32_dpp v%d, v%d, v%d %s row_mask:0xf bank_mask:0xf' % (R4[i], R4[i], R4[i], mode))
        e('s_nop 0')
    e('v_cndmask_b32 v%d, v%d, v%d, vcc' % (R4[0], R4[0], R4[1]))
    V = R4[0]
    e('v_mul_f32 v%d, %s, v%d' % (V, f32hex(1.0 / 1024), V))
    e('v_max_f32 v%d, 0, v%d' % (V, V))
    e('v_cvt_pk_bf16_f32 v%d, v%d, v%d' % (V, V, V))
    e('v_lshlrev_b32 v%d, 16, v%d' % (V, V))
    e('v_add_f32 v%d, %s, v%d' % (V, f32hex(1e-5), V))
    e('v_cvt_pk_bf16_f32 v%d, v%d, v%d' % (V, V, V))
    e('v_lshlrev_b32 v%d, 16, v%d' % (V, V))
    e('v_sqrt_f32 v%d, v%d' % (V, V))
    e('v_lshrrev_b32 v%d, 2, v%d' % (b_, vLane))
    e('v_cvt_pk_bf16_f32 v%d, v%d, v%d' % (V, V, V))
    e('v_lshlrev_b32 v%d, 16, v%d' % (V, V))
    e('v_rcp_f32 v%d, v%d' % (vT + 10, V))
    e('v_mul_f32 v%d, v%d, v%d' % (vT + 12, V, V))
    e('v_mul_f32 v%d, %s, v%d' % (vT + 10, f32hex(-LOG2E), vT + 10))
    e('v_mov_b32 v%d, v%d' % (vT + 13, vT + 12))
    e('v_mov_b32 v%d, v%d' % (vT + 11, vT + 10))
    e('v_lshl_add_u32 v%d, v%d, 4, v%d' % (b_, a_, b_))
    e('s_lshl_b32 s%d, s%d, 9' % (sSS, sWave))
    e('s_add_u32 s%d, s%d, %d' % (sSS, sSS, RS))
    e('v_lshlrev_b32 v%d, 4, v%d' % (b_, b_))
    e('v_add_u32 v%d, s%d, v%d' % (b_, sSS, b_))
    e('ds_write_b128 v%d, %s' % (b_, vr(vT + 10, 4)))
    stat_calc = [l.strip() for l in e.lines]
    if diag:
        stamp(k, 4)

    vN, vQ, vA1, vA2, vA3, vR1, vR2 = vT, vT + 1, vT + 2, vT + 3, vT + 4, vT + 5, vT + 6
    vC = vT + 8
    vX = MB + 0
    vY = vT + 14
    e = K('x')
    e('v_and_b32 v%d, 15, v%d' % (vN, vLane))
    e('v_lshrrev_b32 v%d, 4, v%d' % (vQ, vLane))
    e('s_mul_i32 s%d, s%d, 14' % (sT, sCT))
    e('s_mul_i32 s%d, s%d, 7' % (sT + 4, sT + 2))
    e('s_add_u32 s%d, s%d, s%d' % (sT, sT, sT + 4))
    e('s_lshl_b32 s%d, s%d, 1' % (sT + 5, sRT))
    e('s_lshr_b32 s%d, s%d, 1' % (sT + 4, sT + 3))
    e('s_add_u32 s%d, s%d, s%d' % (sT + 5, sT + 5, sT + 4))
    e('s_mul_i32 s%d, s%d, %d' % (sT + 5, sT + 5, 112 * 8192))
    e('s_and_b32 s%d, s%d, 1' % (sT + 4, sT + 3))
    e('s_lshl_b32 s%d, s%d, 12' % (sT + 4, sT + 4))
    e('s_add_u32 s%d, s%d, s%d' % (sT + 5, sT + 5, sT + 4))

    def chunk_addr(dst, vfc_off, vtb_off):
        e('v_add_u32 v%d, s%d, v%d' % (vY, sT, vfc_off))
        e('v_lshrrev_b32 v%d, 2, v%d' % (vY + 1, vY))
        e('v_lshlrev_b32 v%d, 13, v%d' % (vY + 1, vY + 1))
        e('v_and_b32 v%d, 3, v%d' % (vY, vY))
        e('v_lshl_add_u32 v%d, v%d, 4, v%d' % (vY, vY, vN))
        e('v_lshl_add_u32 v%d, v%d, 4, v%d' % (vY, vY, vY + 1))
        if vtb_off is not None:
            e('v_lshl_add_u32 v%d, v%d, 10, v%d' % (vY, vtb_off, vY))
        e('v_add_u32 v%d, s%d, v%d' % (dst, sT + 5, vY))

    e('v_and_b32 v%d, 1, v%d' % (vR1, vQ))
    e('v_lshrrev_b32 v%d, 1, v%d' % (vR2, vQ))
    e('v_lshl_add_u32 v%d, v%d, 1, v%d' % (vC, vR1, vR2))
    chunk_addr(vA1, vC, None)
    e('v_add_u32 v%d, 4, v%d' % (vC, vR2))
    chunk_addr(vA2, vC, vR1)
    e('v_mov_b32 v%d, 6' % vC)
    chunk_addr(vA3, vC, vQ)
    e('s_mul_i32 s%d, s%d, %d' % (sT + 4, sT + 3, TB * 256))
    e('s_add_u32 s%d, s%d, %d' % (sT + 4, sT + 4, RS))
    e('v_lshlrev_b32 v%d, 4, v%d' % (vY, vN))
    e('v_lshl_add_u32 v%d, v%d, 8, v%d' % (vR2, vR1, vY))
    e('v_add_u32 v%d, s%d, v%d' % (vR1, sT + 4, vY))
    e('v_add_u32 v%d, s%d, v%d' % (vR2, sT + 4, vR2))
    setup_lines = [l.strip() for l in e.lines]

    def epi_pair(jp):
        def swiglu(G, U, C):
            X = vX
            if scalar:
                for i in range(4):
                    k('v_mul_f32 v%d, v%d, v%d' % (X + i, G + i, C))
                for i in range(4):
                    k('v_exp_f32 v%d, v%d' % (X + i, X + i))
                    k('v_mul_f32 v%d, v%d, v%d' % (G + i, G + i, U + i))
                for i in range(4):
                    k('v_fma_f32 v%d, v%d, v%d, v%d' % (X + i, X + i, C + 2, C + 2))
                for i in range(4):
                    k('v_rcp_f32 v%d, v%d' % (X + i, X + i))
                k('s_nop 0')
                for i in range(4):
                    k('v_mul_f32 v%d, v%d, v%d' % (G + i, G + i, X + i))
                return
            k('v_pk_mul_f32 %s, %s, %s' % (vr(X, 2), vr(G, 2), vr(C, 2)))
            k('v_pk_mul_f32 %s, %s, %s' % (vr(X + 2, 2), vr(G + 2, 2), vr(C, 2)))
            for i in range(4):
                k('v_exp_f32 v%d, v%d' % (X + i, X + i))
            k('v_pk_mul_f32 %s, %s, %s' % (vr(G, 2), vr(G, 2), vr(U, 2)))
            k('v_pk_fma_f32 %s, %s, %s, %s' % (vr(X, 2), vr(X, 2), vr(C + 2, 2), vr(C + 2, 2)))
            k('v_pk_fma_f32 %s, %s, %s, %s' % (vr(X + 2, 2), vr(X + 2, 2), vr(C + 2, 2), vr(C + 2, 2)))
            for i in range(4):
                k('v_rcp_f32 v%d, v%d' % (X + i, X + i))
            k('v_pk_mul_f32 %s, %s, %s' % (vr(G + 2, 2), vr(G + 2, 2), vr(U + 2, 2)))
            k('v_pk_mul_f32 %s, %s, %s' % (vr(G, 2), vr(G, 2), vr(X, 2)))
            k('v_pk_mul_f32 %s, %s, %s' % (vr(G + 2, 2), vr(G + 2, 2), vr(X + 2, 2)))

        def store(data, va, j):
            k('buffer_store_dwordx4 %s, v%d, s[%d:%d], 0 offen offset:%d %s' % (vr(data, 4), va, RO, RO + 3, 1024 * j, stflag))

        CC = [MB + 4, MB + 8, vC]
        k('ds_read_b128 %s, v%d offset:%d' % (vr(CC[0], 4), vR1, 256 * jp))
        k('ds_read_b128 %s, v%d offset:%d' % (vr(CC[1], 4), vR1, 256 * (jp + 1)))
        k('ds_read_b128 %s, v%d offset:%d' % (vr(CC[2], 4), vR2, 256 * jp))
        A6, B6 = acc(jp, 6), acc(jp + 1, 6)
        for i in range(4):
            k('v_permlane16_swap_b32 v%d, v%d' % (A6 + i, B6 + i))
        k('s_waitcnt lgkmcnt(0)')
        for dj in range(2):
            j = jp + dj
            for b in range(3):
                swiglu(acc(j, b), acc(j, b + 3), CC[dj])
            P = acc(j, 3)
            k('v_cvt_pk_bf16_f32 v%d, v%d, v%d' % (P, acc(j, 0), acc(j, 0) + 1))
            k('v_cvt_pk_bf16_f32 v%d, v%d, v%d' % (P + 1, acc(j, 0) + 2, acc(j, 0) + 3))
            k('v_cvt_pk_bf16_f32 v%d, v%d, v%d' % (P + 2, acc(j, 1), acc(j, 1) + 1))
            k('v_cvt_pk_bf16_f32 v%d, v%d, v%d' % (P + 3, acc(j, 1) + 2, acc(j, 1) + 3))
            P2 = acc(jp, 4) + 2 * dj
            k('v_cvt_pk_bf16_f32 v%d, v%d, v%d' % (P2, acc(j, 2), acc(j, 2) + 1))
            k('v_cvt_pk_bf16_f32 v%d, v%d, v%d' % (P2 + 1, acc(j, 2) + 2, acc(j, 2) + 3))
            k('v_permlane16_swap_b32 v%d, v%d' % (P, P + 2))
            k('v_permlane16_swap_b32 v%d, v%d' % (P + 1, P + 3))
            store(P, vA1, j)
        swiglu(A6, B6, CC[2])
        P2 = acc(jp, 4)
        k('v_permlane16_swap_b32 v%d, v%d' % (P2, P2 + 2))
        k('v_permlane16_swap_b32 v%d, v%d' % (P2 + 1, P2 + 3))
        store(P2, vA2, jp)
        P3 = acc(0, 5) + 2 * ((jp >> 1) & 1)
        k('v_cvt_pk_bf16_f32 v%d, v%d, v%d' % (P3, A6, A6 + 1))
        k('v_cvt_pk_bf16_f32 v%d, v%d, v%d' % (P3 + 1, A6 + 2, A6 + 3))
        if jp & 2:
            P3 = acc(0, 5)
            k('s_nop 1')
            k('v_permlane32_swap_b32 v%d, v%d' % (P3, P3 + 2))
            k('v_permlane32_swap_b32 v%d, v%d' % (P3 + 1, P3 + 3))
            store(P3, vA3, 0)

    plan = {s: [] for s in range(32)}
    nxt = 2
    for s in range(32):
        tgt = s + LA if s < 22 else s + 5
        while nxt <= min(31, tgt) and len(plan[s]) < 2:
            plan[s].append(nxt)
            nxt += 1
    oplog = [0] * D + [1] * D

    def mf(s, j, b):
        a = acc(j, b)
        c = '0' if s == 0 else vr(a, 4)
        return 'v_mfma_f32_16x16x32_bf16 %s, %s, %s, %s' % (vr(a, 4), ar(fW(s & 1, b), 4), ar(fT(s & 1, j), 4), c)

    def vm_wait(need):
        last = len(oplog) - 1 - oplog[::-1].index(need)
        return min(63, len(oplog) - 1 - last)

    for s in range(32):
        head = 0
        if s == 0:
            k('s_waitcnt lgkmcnt(0)')
            head = 10
            for i in range(head):
                k(mf(0, i // 7, i % 7))
            k('s_waitcnt vmcnt(0)')
            k('s_barrier')
        elif s <= T0:
            k('s_waitcnt vmcnt(%d) lgkmcnt(0)' % vm_wait(s + 1 if s < T0 else 31))
            k('s_barrier')
            if s == T0 and prio:
                lab = k.newlabel('noprio')
                if bprio:
                    k('s_setprio %d' % bprio)
                k('s_cmp_ge_u32 s%d, 4' % sWave)
                k('s_cbranch_scc1 %s' % lab)
                k('s_setprio %d' % prio)
                k.label(lab)
            if diag and s == T0:
                stamp(k, 6)
        else:
            k('s_waitcnt lgkmcnt(0)')
        if diag and s == 1:
            stamp(k, 5)
        if s == 0:
            main = [mf(s, j, b) for j in range(TB) for b in range(7)][head:]
        else:
            main = [mf(s, j, b if j % 2 == 0 else 6 - b) for j in range(TB) for b in range(7)]
        n = len(main)
        rg = read_groups(s + 1) if s < 31 else []
        dg = []
        for st in plan[s]:
            dg += dma_groups(st)
            oplog.extend([st] * D)
        if s == 2:
            dg += stat_loads
            oplog.extend(['S'] * 2)
        if s in ct:
            dg.append([code_touch(RC, vCT, vT + 7)])
            oplog.append('C')
        if s in pfx:
            n_ = pfx.index(s)
            dg.append(['s_bfe_u32 s%d, s2, 0x20001' % (sT + 6), 's_add_u32 s%d, s%d, %d' % (sT + 6, sT + 6, n_), 's_and_b32 s%d, s%d, 3' % (sT + 6, sT + 6),
                       's_lshl_b32 s%d, s%d, 21' % (sT + 6, sT + 6),
                       'buffer_load_dword v%d, v%d, s[%d:%d], s%d offen' % (vT + 7, vPF, RP, RP + 3, sT + 6)])
            oplog.append('P')
        slots = [[] for _ in range(n)]
        extra = stat_calc if s == 6 else (setup_lines if s == 27 else [])
        for i, l in enumerate(extra):
            slots[min(n - 1, int(i * (n - 1) / len(extra)))].append([l])
        rde = rd_end if s < T0 else 0.7
        for i, g_ in enumerate(rg):
            slots[int(i * n * rde / len(rg))].append(g_)
        for i, g_ in enumerate(dg):
            slots[min(n - 1, int((i + 0.5) * n / len(dg)))].append(g_)
        for i in range(n):
            k(main[i])
            for g_ in slots[i]:
                for l in g_:
                    k(l)
    if prio:
        k('s_setprio 0')
    k('s_nop 7')
    for jp in (0, 2):
        epi_pair(jp)
    if diag:
        stamp_flush(k, kidx, 8, sWS, 48, 2, 0)
    k.label(done)
    k('s_endpgm')
    ao = MB + 32
    txt = k.text(ao + 2 * FSET + 8, ao)
    return dict(name=name, text=txt, grid=256, block=512, lds=LDS, nst=8)
```

```python
from asmlib import *


def gen_kd(PD=2, diag=False, kidx=3, nomfma=False, name='kd_kernel', lead=4, ndes=2, tflag='', wflag='', stflag='', spf=0, spf_start=2, spf_wait=8, korder='', dbg='', tstore=True, wlin=False):
    k = K(name)
    NT = PD + 1
    NWS = 4
    NSTEP = 28
    RED = 65536
    LDS = 163840
    MB = 128
    vDT = [MB + i for i in range(4)]
    vDW = [MB + 4 + i for i in range(4)]
    vWR = [MB + 8 + i for i in range(4)]
    vLane = MB + 12
    vTab = MB + 13
    vRW = [MB + 14 + i for i in range(3)]
    vRR = MB + 17
    vAO = MB + 18
    vT = MB + 20
    vH = MB + 32
    vMU = MB + 48
    NV = MB + 52
    if spf:
        assert PD == 1
        NV = MB + 32
    sWS, sWave, sTT, sCT, sTO, sWO, sMW, sNX = 4, 28, 29, 30, 31, 32, 34, 36
    sT = 40
    RT, RW, RO, RH, RMU = 12, 16, 20, 24, 52

    def acc(j, b):
        return (j * 4 + b) * 4

    def fT(s, j):
        return s * 32 + j * 4

    def fW(s, b):
        return NT * 32 + s * 16 + b * 4

    done = k.newlabel('done')
    k('s_cmp_ge_u32 s2, 256')
    k('s_cbranch_scc1 %s' % done)
    if diag:
        stamp(k, 0)
    k('s_load_dwordx4 s[8:11], s[0:1], %d' % KARG['wd'])
    k('s_load_dwordx2 s[4:5], s[0:1], %d' % KARG['ws'])
    k('v_and_b32 v%d, 63, v0' % vLane)
    k('v_lshrrev_b32 v%d, 6, v0' % vT)
    k('s_and_b32 s%d, s2, 7' % sT)
    k('v_readfirstlane_b32 s%d, v%d' % (sWave, vT))
    k('s_lshr_b32 s%d, s2, 3' % (sT + 1))
    k('s_lshr_b32 s%d, s%d, 1' % (sT + 2, sT))
    k('s_lshl_b32 s%d, s%d, 2' % (sT + 2, sT + 2))
    k('s_lshr_b32 s%d, s%d, 3' % (sT + 3, sT + 1))
    k('s_add_u32 s%d, s%d, s%d' % (sTT, sT + 2, sT + 3))
    k('s_and_b32 s%d, s%d, 1' % (sT + 2, sT))
    k('s_lshl_b32 s%d, s%d, 3' % (sT + 2, sT + 2))
    k('s_and_b32 s%d, s%d, 7' % (sT + 3, sT + 1))
    k('s_add_u32 s%d, s%d, s%d' % (sCT, sT + 2, sT + 3))
    if lead:
        k('s_lshl_b32 s%d, s%d, 1' % (sT + 2, sTT))
        k('s_add_u32 s%d, s%d, s%d' % (sT + 2, sT + 2, sCT))
        k('s_and_b32 s%d, s%d, 7' % (sT + 2, sT + 2))
        pat = ((1 << ndes) - 1) * 0x01010101
        k('s_mov_b32 s%d, 0x%x' % (sT + 4, pat))
        k('s_mov_b32 s%d, 0x%x' % (sT + 5, pat))
        k('s_lshl_b64 s[%d:%d], s[%d:%d], s%d' % (sT + 4, sT + 5, sT + 4, sT + 5, sT + 2))
        k('s_and_b32 s%d, s%d, 0x0fffffff' % (sT + 5, sT + 5))
        M = sT + 5
        k('v_lshrrev_b32 v%d, v%d, s%d' % (vT, vLane, M) if False else 'v_mov_b32 v%d, s%d' % (vT + 1, M))
        k('v_lshrrev_b32 v%d, v%d, v%d' % (vT, vLane, vT + 1))
        k('v_and_b32 v%d, 1, v%d' % (vT, vT))
        k('v_cmp_eq_u32 vcc, 1, v%d' % vT)
        k('v_subrev_u32 v%d, %d, v%d' % (vT + 2, lead, vLane))
        k('v_max_i32 v%d, 0, v%d' % (vT + 2, vT + 2))
        k('v_add_u32 v%d, %d, v%d' % (vT + 3, lead + 1, vLane))
        k('v_min_u32 v%d, 28, v%d' % (vT + 3, vT + 3))
        k('v_cndmask_b32 v%d, v%d, v%d, vcc' % (vT + 2, vLane, vT + 2))
        k('v_cndmask_b32 v%d, v%d, v%d, vcc' % (vT + 3, vT + 3, vLane))
        k('v_bfm_b32 v%d, v%d, 0' % (vT + 4, vT + 2))
        k('v_and_b32 v%d, v%d, v%d' % (vT + 4, vT + 4, vT + 1))
        k('v_bcnt_u32_b32 v%d, v%d, 0' % (vT + 4, vT + 4))
        k('v_sub_u32 v%d, v%d, v%d' % (vT + 2, vT + 2, vT + 4))
        k('v_bfm_b32 v%d, v%d, 0' % (vT + 4, vT + 3))
        k('v_and_b32 v%d, v%d, v%d' % (vT + 4, vT + 4, vT + 1))
        k('v_bcnt_u32_b32 v%d, v%d, v%d' % (vT + 2, vT + 4, vT + 2))
        k('v_cmp_gt_u32 vcc, 28, v%d' % vLane)
        k('s_nop 1')
        k('v_cndmask_b32 v%d, v%d, v%d, vcc' % (vT + 2, vLane, vT + 2))
        k('v_lshlrev_b32 v%d, 2, v%d' % (vT + 2, vT + 2))
        k('ds_permute_b32 v%d, v%d, v%d' % (vTab, vT + 2, vLane))
    else:
        k('v_mov_b32 v%d, v%d' % (vTab, vLane))
    k('v_lshlrev_b32 v%d, 4, v%d' % (vT, vLane))
    for p in range(4):
        k('s_add_u32 s%d, s%d, %d' % (sT + 2, sWave, p + 1))
        k('s_and_b32 s%d, s%d, 3' % (sT + 2, sT + 2))
        k('s_lshl_b32 s%d, s%d, 11' % (sT + 3, sT + 2))
        k('v_add_u32 v%d, s%d, v%d' % (vDT[p], sT + 3, vT))
        k('s_mul_i32 s%d, s%d, %d' % (sT + 3, sT + 2, 3 * 8192))
        k('s_add_u32 s%d, s%d, %d' % (sT + 3, sT + 3, RED + (p % 3) * 8192))
        k('v_add_u32 v%d, s%d, v%d' % (vRW[p] if p < 3 else vRR, sT + 3, vT))
    k('v_lshrrev_b32 v%d, 3, v%d' % (vT, vLane))
    k('v_and_b32 v%d, 6, v%d' % (vT + 1, vT))
    k('v_and_b32 v%d, 7, v%d' % (vT + 2, vLane))
    k('v_xor_b32 v%d, v%d, v%d' % (vT + 2, vT + 2, vT + 1))
    k('v_and_b32 v%d, 3, v%d' % (vT + 3, vT))
    k('v_lshrrev_b32 v%d, 2, v%d' % (vT + 4, vT))
    k('v_lshl_add_u32 v%d, v%d, 3, v%d' % (vT + 3, vT + 4, vT + 3))
    k('v_lshlrev_b32 v%d, 11, v%d' % (vT + 3, vT + 3))
    k('v_lshl_add_u32 v%d, v%d, 4, v%d' % (vT + 3, vT + 2, vT + 3))
    k('s_lshl_b32 s%d, s%d, 7' % (sT + 2, sCT))
    k('v_add_u32 v%d, s%d, v%d' % (vT + 3, sT + 2, vT + 3))
    for p in range(4):
        hh, qh = p >> 1, p & 1
        kk = 16 * qh + 4 * hh
        k('v_add_u32 v%d, %d, v%d' % (vDW[p], kk * 2048 + 4096 - 1024 * p, vT + 3))
    if wlin:
        k('v_lshlrev_b32 v%d, 4, v%d' % (vDW[0], vLane))
    k('s_lshl_b32 s%d, s%d, 14' % (sMW, sWave))
    k('s_mul_i32 s%d, s%d, %d' % (sT, sTT, 112 * 8192))
    k('s_add_u32 s%d, s%d, 0x%x' % (sT, sT, WS_ACT))
    k('s_waitcnt lgkmcnt(0)')
    if diag:
        stamp(k, 1)
    pfl = k.newlabel('pf')
    if spf:
        k('s_cmp_ge_u32 s%d, 4' % sWave)
        k('s_cbranch_scc1 %s' % pfl)
    if korder == '':
        k('v_lshlrev_b32 v%d, 2, v%d' % (vTab, vTab))
        k('v_add_u32 v%d, s%d, v%d' % (vTab, sWave, vTab))
    elif korder in ('xrot', 'xalt', 'xalt2'):
        if korder == 'xalt':
            k('v_and_b32 v%d, 1, v%d' % (vT, vTab))
            k('v_mul_u32_u24 v%d, 14, v%d' % (vT, vT))
            k('v_lshrrev_b32 v%d, 1, v%d' % (vTab, vTab))
            k('v_add_u32 v%d, v%d, v%d' % (vTab, vTab, vT))
        if korder == 'xalt2':
            k('s_lshr_b32 s%d, s%d, 1' % (sT + 2, sWave))
            k('s_mul_i32 s%d, s%d, 14' % (sT + 2, sT + 2))
            k('v_add_u32 v%d, s%d, v%d' % (vTab, sT + 2, vTab))
            k('v_subrev_u32 v%d, 28, v%d' % (vT, vTab))
            k('v_min_u32 v%d, v%d, v%d' % (vTab, vTab, vT))
        k('s_bfe_u32 s%d, s2, 0x20001' % (sT + 2))
        k('s_lshl_b32 s%d, s%d, 3' % (sT + 2, sT + 2))
        k('v_add_u32 v%d, s%d, v%d' % (vTab, sT + 2, vTab))
        k('v_subrev_u32 v%d, 28, v%d' % (vT, vTab))
        k('v_min_u32 v%d, v%d, v%d' % (vTab, vTab, vT))
        k('v_lshlrev_b32 v%d, 2, v%d' % (vTab, vTab))
        k('v_add_u32 v%d, s%d, v%d' % (vTab, sWave, vTab))
    elif korder == 'quart':
        k('s_mul_i32 s%d, s%d, 28' % (sT + 2, sWave))
        k('v_add_u32 v%d, s%d, v%d' % (vTab, sT + 2, vTab))
    elif korder == 'wave':
        k('s_lshr_b32 s%d, s%d, 1' % (sT + 2, sWave))
        k('s_xor_b32 s%d, s%d, s2' % (sT + 2, sT + 2))
        k('s_and_b32 s%d, s%d, 1' % (sT + 2, sT + 2))
        k('s_mul_i32 s%d, s%d, 56' % (sT + 2, sT + 2))
        k('s_and_b32 s%d, s%d, 1' % (sT + 3, sWave))
        k('s_add_u32 s%d, s%d, s%d' % (sT + 2, sT + 2, sT + 3))
        k('v_lshlrev_b32 v%d, 1, v%d' % (vTab, vTab))
        k('v_add_u32 v%d, s%d, v%d' % (vTab, sT + 2, vTab))
    elif korder in ('alt', 'first'):
        if korder == 'alt':
            k('s_lshr_b32 s%d, s%d, 1' % (sT + 2, sWave))
            k('s_xor_b32 s%d, s%d, s2' % (sT + 2, sT + 2))
            k('v_xor_b32 v%d, s%d, v%d' % (vT, sT + 2, vTab))
            k('v_and_b32 v%d, 1, v%d' % (vT, vT))
            k('v_mul_u32_u24 v%d, 56, v%d' % (vT, vT))
            k('v_lshrrev_b32 v%d, 1, v%d' % (vTab, vTab))
            k('v_lshl_add_u32 v%d, v%d, 2, v%d' % (vTab, vTab, vT))
            k('v_add_u32 v%d, s%d, v%d' % (vTab, sWave, vTab))
        else:
            k('s_and_b32 s%d, s2, 1' % (sT + 2))
            k('s_mul_i32 s%d, s%d, 14' % (sT + 2, sT + 2))
            k('v_add_u32 v%d, s%d, v%d' % (vTab, sT + 2, vTab))
            k('v_subrev_u32 v%d, 28, v%d' % (vT, vTab))
            k('v_min_u32 v%d, v%d, v%d' % (vTab, vTab, vT))
            k('v_lshlrev_b32 v%d, 2, v%d' % (vTab, vTab))
            k('v_add_u32 v%d, s%d, v%d' % (vTab, sWave, vTab))
    k('v_lshlrev_b32 v%d, 13, v%d' % (vTab, vTab))
    k('s_add_u32 s%d, s4, s%d' % (RT, sT))
    k('v_readlane_b32 s%d, v%d, 0' % (sNX, vTab))
    k('s_addc_u32 s%d, s5, 0' % (RT + 1))
    k('s_mov_b32 s%d, 0x%x' % (RT + 2, 0 if 'not' in dbg else 112 * 8192))
    k('s_mov_b32 s%d, 0x20000' % (RT + 3))
    if wlin:
        k('s_mul_i32 s%d, s%d, %d' % (sT + 2, sCT, 112 * 4096))
        k('s_add_u32 s%d, s%d, 0x%x' % (sT + 2, sT + 2, WS_WD))
        k('s_add_u32 s%d, s4, s%d' % (RW, sT + 2))
        k('s_addc_u32 s%d, s5, 0' % (RW + 1))
        k('s_mov_b32 s%d, 0x%x' % (RW + 2, 112 * 4096))
    else:
        k('s_sub_u32 s%d, s8, 0x1000' % RW)
        k('s_subb_u32 s%d, s9, 0' % (RW + 1))
        k('s_mov_b32 s%d, 0x%x' % (RW + 2, 0 if 'now' in dbg else 3584 * 2048 + 4096))
    k('s_mov_b32 s%d, 0x20000' % (RW + 3))
    wsh = 's_lshr_b32 s%d, s%d, 1' % (sWO, sNX) if wlin else 's_lshl_b32 s%d, s%d, 3' % (sWO, sNX)
    k(wsh)

    def wdma(i, p):
        g = []
        if p == 0:
            g += ['s_add_u32 m0, s%d, %d' % (sMW, (i % NWS) * 4096), 's_nop 0']
        g.append('buffer_load_dwordx4 v%d, s[%d:%d], s%d offen offset:%d %s lds' % (vDW[0 if wlin else p], RW, RW + 3, sWO, 1024 * p, wflag))
        return g

    def advance(i):
        g = ['s_mov_b32 s%d, s%d' % (sTO, sNX)]
        if i + 1 < NSTEP:
            g += ['v_readlane_b32 s%d, v%d, %d' % (sNX, vTab, i + 1), 's_nop 2', wsh]
        return g

    def tload(i, j):
        return ['buffer_load_dwordx4 %s, v%d, s[%d:%d], s%d offen offset:%d %s' % (ar(fT(i % NT, j), 4), vDT[j >> 1], RT, RT + 3, sTO, 1024 * (j & 1), tflag)]

    def wread(i, idx):
        b, hh = idx >> 1, idx & 1
        return ['ds_read_b64_tr_b16 %s, v%d offset:%d' % (ar(fW(i % 2, b) + 2 * hh, 2), vWR[b], (i % NWS) * 4096 + hh * 2048)]

    log = []

    def issue(lines, op):
        log.append(op)
        return lines

    def group_ops(i):
        out = {j: [] for j in range(8)}
        for j in range(8):
            if i + 1 < NSTEP:
                for p in {0: [0, 1], 1: [2, 3]}.get(j, []):
                    out[j].append((('W', i + 1, p), wdma(i + 1, p)))
            l = tload(i, j)
            if j == 7 and i + 1 < NSTEP:
                l = l + advance(i + 1)
            out[j].append((('T', i, j), l))
        return out

    def need(op):
        return len(log) - 1 - log.index(op)

    for p in range(4):
        for l in issue(wdma(0, p), ('W', 0, p)):
            k(l)
    for l in advance(0):
        k(l)
    for i in range(PD):
        go = group_ops(i)
        for j in range(8):
            for op, lines in go[j]:
                for l in issue(lines, op):
                    k(l)
    k('v_lshrrev_b32 v%d, 2, v%d' % (vT, vLane))
    k('v_and_b32 v%d, 6, v%d' % (vT + 1, vT))
    k('v_and_b32 v%d, 3, v%d' % (vT + 2, vLane))
    k('v_lshlrev_b32 v%d, 3, v%d' % (vT + 2, vT + 2))
    k('v_lshl_add_u32 v%d, v%d, 7, v%d' % (vT + 2, vT, vT + 2))
    k('v_add_u32 v%d, s%d, v%d' % (vT + 2, sMW, vT + 2))
    for b in range(4):
        k('v_xor_b32 v%d, %d, v%d' % (vT + 3, 2 * b, vT + 1))
        k('v_lshl_add_u32 v%d, v%d, 4, v%d' % (vWR[b], vT + 3, vT + 2))
    srd(k, RO, 10, 2048 * 2048)
    srd(k, RH, sWS, 2048 * 2048, WS_HC)
    srd(k, RMU, sWS, 16384, WS_MU)
    vN, vQ, vCh, vAH = vT, vT + 1, vT + 2, vT + 3
    vX = vT + 4
    k('v_and_b32 v%d, 15, v%d' % (vN, vLane))
    k('v_lshrrev_b32 v%d, 4, v%d' % (vQ, vLane))
    k('v_and_b32 v%d, 1, v%d' % (vX, vQ))
    k('v_lshrrev_b32 v%d, 1, v%d' % (vX + 1, vQ))
    k('v_lshl_add_u32 v%d, v%d, 1, v%d' % (vCh, vX, vX + 1))
    k('s_lshl_b32 s%d, s%d, 3' % (sT + 2, sTT))
    k('s_lshl_b32 s%d, s%d, 1' % (sT + 3, sWave))
    k('s_add_u32 s%d, s%d, s%d' % (sT + 2, sT + 2, sT + 3))
    k('s_lshl_b32 s%d, s%d, 6' % (sT + 3, sT + 2))
    k('s_lshr_b32 s%d, s%d, 3' % (sT + 4, sCT))
    k('s_lshl_b32 s%d, s%d, 13' % (sT + 4, sT + 4))
    k('s_add_u32 s%d, s%d, s%d' % (sT + 3, sT + 3, sT + 4))
    k('v_lshlrev_b32 v%d, 2, v%d' % (vMU + 1, vN))
    k('v_add_u32 v%d, s%d, v%d' % (vMU + 1, sT + 3, vMU + 1))
    k('s_lshr_b32 s%d, s%d, 4' % (sT + 3, sT + 2))
    k('s_lshl_b32 s%d, s%d, 4' % (sT + 3, sT + 3))
    k('s_add_u32 s%d, s%d, s%d' % (sT + 3, sT + 3, sCT))
    k('s_lshl_b32 s%d, s%d, 15' % (sT + 3, sT + 3))
    k('s_and_b32 s%d, s%d, 15' % (sT + 4, sT + 2))
    k('s_lshl_b32 s%d, s%d, 10' % (sT + 4, sT + 4))
    k('s_add_u32 s%d, s%d, s%d' % (sT + 3, sT + 3, sT + 4))
    k('s_add_u32 s%d, s%d, 0x4000' % (sT + 4, sT + 3))
    k('v_lshl_add_u32 v%d, v%d, 4, v%d' % (vAH, vCh, vN))
    k('v_lshlrev_b32 v%d, 4, v%d' % (vAH, vAH))
    k('s_lshl_b32 s%d, s%d, 20' % (sT + 5, sWave))
    k('s_lshl_b32 s%d, s%d, 11' % (sT + 6, sTT))
    k('s_add_u32 s%d, s%d, s%d' % (sT + 5, sT + 5, sT + 6))
    k('s_lshl_b32 s%d, s%d, 7' % (sT + 6, sCT))
    k('s_add_u32 s%d, s%d, s%d' % (sT + 5, sT + 5, sT + 6))
    k('s_add_u32 s%d, s%d, 0x80000' % (sT + 6, sT + 5))
    vTW, vTR = vT + 8, vT + 9
    if tstore:
        k('v_and_b32 v%d, 7, v%d' % (vX, vN))
        k('v_xor_b32 v%d, v%d, v%d' % (vX, vX, vCh))
        k('v_lshlrev_b32 v%d, 7, v%d' % (vTW, vN))
        k('v_lshl_add_u32 v%d, v%d, 4, v%d' % (vTW, vX, vTW))
        k('v_add_u32 v%d, s%d, v%d' % (vTW, sMW, vTW))
        k('v_xor_b32 v%d, 64, v%d' % (vT + 10, vTW))
        k('v_lshrrev_b32 v%d, 3, v%d' % (vX, vLane))
        k('v_and_b32 v%d, 7, v%d' % (vX + 1, vLane))
        k('v_lshlrev_b32 v%d, 15, v%d' % (vAO, vX))
        k('v_lshl_add_u32 v%d, v%d, 4, v%d' % (vAO, vX + 1, vAO))
        k('v_xor_b32 v%d, v%d, v%d' % (vX + 1, vX + 1, vX))
        k('v_lshlrev_b32 v%d, 7, v%d' % (vTR, vX))
        k('v_lshl_add_u32 v%d, v%d, 4, v%d' % (vTR, vX + 1, vTR))
        k('v_add_u32 v%d, s%d, v%d' % (vTR, sMW, vTR))
        for i in range(1, 4):
            k('s_add_u32 s%d, s%d, 0x%x' % (sT + 5 + i, sT + 5, i * 0x40000))
    else:
        k('v_lshlrev_b32 v%d, 15, v%d' % (vAO, vN))
        k('v_lshl_add_u32 v%d, v%d, 4, v%d' % (vAO, vCh, vAO))

    aH = fT((NSTEP - 2) % NT, 0)

    def hreg(dj, be):
        return ar(aH + 8 * dj + 4 * be, 4) if spf else vr(vH + 8 * dj + 4 * be, 4)

    def hloads():
        g = []
        for dj in range(2):
            for be in range(2):
                g.append((('H', dj, be), ['buffer_load_dwordx4 %s, v%d, s[%d:%d], s%d offen offset:%d' % (hreg(dj, be), vAH, RH, RH + 3, sT + 3 + be, 1024 * dj)]))
        return g

    k('s_waitcnt vmcnt(%d)' % need(('W', 0, 3)))
    for idx in range(8):
        for l in wread(0, idx):
            k(l)
    if diag:
        stamp(k, 2)
    for i in range(NSTEP):
        go = group_ops(i + PD) if i + PD < NSTEP else {j: [] for j in range(8)}
        if i == NSTEP - 3 and not spf:
            for j, h in enumerate(hloads()):
                go[6 + (j >> 1)].append(h)
        if i == NSTEP - 4:
            for dj in range(2):
                go[6 + dj].append((('M', dj), ['buffer_load_dword v%d, v%d, s[%d:%d], 0 offen offset:%d' % (vMU + 2 * dj, vMU + 1, RMU, RMU + 3, 64 * dj)]))
        if i == NSTEP - 1 and spf:
            for j, h in enumerate(hloads()):
                go[j >> 1].append(h)
        pend = []
        for j in range(8):
            n = need(('T', i, j))
            k('s_waitcnt vmcnt(%d)%s' % (n, ' lgkmcnt(0)' if j == 0 else ''))
            side = [issue(lines, op) for op, lines in go[j]]
            if 2 <= j <= 5 and i + 1 < NSTEP:
                side.append(wread(i + 1, 2 * (j - 2)))
                side.append(wread(i + 1, 2 * (j - 2) + 1))
            if i == NSTEP - 1 and j >= 2:
                jj = j - 2
                side = [['ds_write_b128 v%d, %s offset:%d' % (vRW[jj >> 1], vr(acc(jj, b), 4), ((jj & 1) * 4 + b) * 1024)] for b in range(4)]
            assert len(side) <= 4
            for b in range(4):
                a = acc(j, b)
                c = '0' if i == 0 else vr(a, 4)
                if nomfma:
                    k('s_nop 0')
                else:
                    k('v_mfma_f32_16x16x32_bf16 %s, %s, %s, %s' % (vr(a, 4), ar(fW(i % 2, b), 4), ar(fT(i % NT, j), 4), c))
                if b < len(side):
                    for l in side[b]:
                        k(l)
    if diag:
        stamp(k, 3)
    k('s_waitcnt lgkmcnt(0)')
    k('s_barrier')
    for idx in range(3):
        for qd in range(8):
            k('ds_read_b128 %s, v%d offset:%d' % (vr(32 * idx + 4 * qd, 4), vRR, idx * 8192 + qd * 1024))
    own = acc(6, 0)
    for idx in range(3):
        k('s_waitcnt lgkmcnt(%d)' % min(15, 8 * (2 - idx)))
        for r in range(0, 32, 2):
            k('v_pk_add_f32 %s, %s, %s' % (vr(own + r, 2), vr(own + r, 2), vr(32 * idx + r, 2)))
    k('s_waitcnt vmcnt(0)')
    k('v_mov_b32 v%d, v%d' % (vMU + 1, vMU))
    k('v_mov_b32 v%d, v%d' % (vMU + 3, vMU + 2))
    if spf:
        vH = 0
        for r in range(16):
            k('v_accvgpr_read_b32 v%d, a%d' % (r, aH + r))
    for dj in range(2):
        for be in range(2):
            A = own + (dj * 4 + 2 * be) * 4
            B = A + 4
            for i in range(4):
                k('v_permlane16_swap_b32 v%d, v%d' % (A + i, B + i))
            H = vH + 8 * dj + 4 * be
            for i in range(4):
                D0 = A + 2 * i
                k('v_lshlrev_b32 v%d, 16, v%d' % (vX + 2, H + i))
                k('v_and_b32 v%d, 0xffff0000, v%d' % (vX + 3, H + i))
                k('v_pk_add_f32 %s, %s, %s' % (vr(D0, 2), vr(D0, 2), vr(vMU + 2 * dj, 2)))
                k('v_pk_add_f32 %s, %s, %s' % (vr(D0, 2), vr(D0, 2), vr(vX + 2, 2)))
                k('v_cvt_pk_bf16_f32 v%d, v%d, v%d' % (H + i, D0, D0 + 1))
            if tstore:
                k('ds_write_b128 v%d, %s offset:%d' % (vTW if be == 0 else vT + 10, vr(H, 4), 2048 * dj))
            else:
                k('buffer_store_dwordx4 %s, v%d, s[%d:%d], s%d offen offset:%d %s' % (vr(H, 4), vAO, RO, RO + 3, sT + 5 + dj, 64 * be, stflag))
    if tstore:
        k('s_waitcnt lgkmcnt(0)')
        for i in range(4):
            k('ds_read_b128 %s, v%d offset:%d' % (vr(32 + 4 * i, 4), vTR, 1024 * i))
        for i in range(4):
            k('s_waitcnt lgkmcnt(%d)' % (3 - i))
            k('buffer_store_dwordx4 %s, v%d, s[%d:%d], s%d offen %s' % (vr(32 + 4 * i, 4), vAO, RO, RO + 3, sT + 5 + i, stflag))
    if diag:
        k('s_waitcnt vmcnt(0)')
        stamp_flush(k, kidx, 5, sWS, 48, 2, 0)
    if spf:
        k('s_endpgm')
        k.label(pfl)
        wl = k.newlabel('pfw')
        go_ = k.newlabel('pfgo')
        k('s_and_b32 s%d, s%d, 1' % (sT + 2, sWave))
        k('s_cmp_ge_u32 s%d, 6' % sWave)
        k('s_cbranch_scc1 %s' % wl)
        k('s_and_b32 s%d, s%d, 7' % (sT + 3, sCT))
        k('s_lshl_b32 s%d, s%d, 12' % (sT + 3, sT + 3))
        k('s_lshl_b32 s%d, s%d, 11' % (sT + 2, sT + 2))
        k('s_add_u32 s%d, s%d, s%d' % (sT + 3, sT + 3, sT + 2))
        k('s_add_u32 s%d, s%d, s%d' % (sT + 3, sT + 3, sT))
        k('s_add_u32 s%d, s%d, %d' % (sT + 3, sT + 3, spf_start * 32768))
        k('s_add_u32 s12, s4, s%d' % (sT + 3))
        k('s_addc_u32 s13, s5, 0')
        la = k.newlabel('pfa')
        k('s_mov_b32 s%d, %d' % (sT + 4, spf_start))
        k.label(la)
        for n in range(16):
            k('s_load_dword s%d, s[12:13], 0x%x' % (64 + n, 128 * n))
            if n % 4 == 3:
                k('s_waitcnt lgkmcnt(%d)' % spf_wait)
        k('s_add_u32 s12, s12, 0x8000')
        k('s_addc_u32 s13, s13, 0')
        k('s_add_u32 s%d, s%d, 1' % (sT + 4, sT + 4))
        k('s_cmp_lt_u32 s%d, %d' % (sT + 4, NSTEP))
        k('s_cbranch_scc1 %s' % la)
        k('s_endpgm')
        k.label(wl)
        k('s_and_b32 s%d, s%d, 3' % (sT + 3, sTT))
        k('s_lshl_b32 s%d, s%d, 16' % (sT + 3, sT + 3))
        k('s_lshl_b32 s%d, s%d, 15' % (sT + 2, sT + 2))
        k('s_add_u32 s%d, s%d, s%d' % (sT + 3, sT + 3, sT + 2))
        k('s_lshl_b32 s%d, s%d, 7' % (sT + 2, sCT))
        k('s_add_u32 s%d, s%d, s%d' % (sT + 3, sT + 3, sT + 2))
        k('s_add_u32 s%d, s%d, %d' % (sT + 3, sT + 3, spf_start * 262144))
        k('s_add_u32 s12, s8, s%d' % (sT + 3))
        k('s_addc_u32 s13, s9, 0')
        lb = k.newlabel('pfb')
        k('s_mov_b32 s%d, %d' % (sT + 4, spf_start))
        k.label(lb)
        for n in range(16):
            k('s_load_dword s%d, s[12:13], 0x%x' % (64 + n, 2048 * n))
            if n % 4 == 3:
                k('s_waitcnt lgkmcnt(%d)' % spf_wait)
        k('s_add_u32 s12, s12, 0x40000')
        k('s_addc_u32 s13, s13, 0')
        k('s_add_u32 s%d, s%d, 1' % (sT + 4, sT + 4))
        k('s_cmp_lt_u32 s%d, %d' % (sT + 4, NSTEP))
        k('s_cbranch_scc1 %s' % lb)
    k.label(done)
    k('s_endpgm')
    txt = k.text(NV + NT * 32 + 32, NV)
    return dict(name=name, text=txt, grid=256, block=512 if spf else 256, lds=LDS, nst=5)
```
